```python
import torch

def _softmax(x, axis=-1):
    return torch.softmax(x, dim=axis)
def _gelu(x):
    return torch.nn.functional.gelu(x, approximate="tanh")
def _silu(x):
    return torch.nn.functional.silu(x)
def _sigmoid(x):
    return torch.sigmoid(x)
def _layernorm(x, axis=-1, eps=1e-5):
    m = x.mean(dim=axis, keepdim=True)
    v = x.var(dim=axis, keepdim=True, unbiased=False)
    return (x - m) / torch.sqrt(v + eps)
def _scatter_add(tgt, idx, src, axis=0):
    return tgt.clone().index_add_(axis, idx, src)
def _segment_sum(src, seg, n):
    out = torch.zeros((n,) + src.shape[1:], dtype=src.dtype)
    return out.index_add_(0, seg, src)
def _pad(x, pw):
    flat = tuple(v for pair in reversed(pw) for v in pair)
    return torch.nn.functional.pad(x, flat)

kernel_name = 'gather_scatter__kernel_systems_refs_featgraph__graph'

def setup_inputs():

    _w = (lambda a: (lambda t: t.to(torch.bfloat16) if t.is_floating_point() else t)(torch.as_tensor(a)))
    N, deg, D = 12500, 64, 64
    E = N * deg
    scale = D ** -0.5
    src = (lambda lo, hi, *s: torch.randint(lo, hi, s))(0, N, E).to(torch.int64)
    dst = (lambda lo, hi, *s: torch.randint(lo, hi, s))(0, N, E).to(torch.int64)
    return {
        "x": _w((lambda *s: torch.randn(*s, dtype=torch.bfloat16) * 0.8)(N, D)),
        "src": _w(src),
        "dst": _w(dst),
        "w_q": _w((lambda *s: torch.randn(*s, dtype=torch.bfloat16) * 0.8)(D, D) * scale),
        "w_v": _w((lambda *s: torch.randn(*s, dtype=torch.bfloat16) * 0.05)(D, D) * scale),
    }

def reference(x, src, dst, w_q, w_v):
    N, D = x.shape
    xs = x[src]
    xd = x[dst]
    q = xd @ w_q
    logits = torch.einsum('ed,ed->e', xs, q) * (float(D) ** -0.5)
    alpha = _sigmoid(logits)
    msg = alpha[:, None] * (xs @ w_v)
    return _segment_sum(msg, dst, N)
```

```python
import sys, argparse
from build import build

N=12500; E=800000; EPW=3136; PSTRIDE=EPW*4
WS_EDG=0; WS_T=0x400000; WS_Q=0x500000; WS_WV=0x700000; WS_STAMP=0x8000000
NSTAMP=16
SENT=0x7FFFFF80|126

class Asm:
    def __init__(s): s.L=[]
    def __call__(s,*lines):
        for l in lines:
            for x in l.split("\n"):
                x=x.strip()
                if x: s.L.append(("" if x.endswith(":") else "    ")+x)
    def text(s): return "\n".join(s.L)+"\n"

def kd(name,vgpr,sgpr):
    return f""".section .rodata,"a"
.p2align 6
.amdhsa_kernel {name}
  .amdhsa_next_free_vgpr {vgpr}
  .amdhsa_next_free_sgpr {sgpr}
  .amdhsa_accum_offset {(vgpr+3)//4*4}
  .amdhsa_group_segment_fixed_size 0
  .amdhsa_kernarg_size 64
  .amdhsa_user_sgpr_count 2
  .amdhsa_user_sgpr_kernarg_segment_ptr 1
  .amdhsa_system_sgpr_workgroup_id_x 1
.end_amdhsa_kernel
.text
"""
def head(name): return f".globl {name}\n.p2align 8\n.type {name},@function\n{name}:"

def srd(a,d,lo,hi,nbytes,add=0):
    if add:
        a(f"s_add_u32 s{d}, s{lo}, {add:#x}", f"s_addc_u32 s{d+1}, s{hi}, 0", f"s_and_b32 s{d+1}, s{d+1}, 0xffff")
    else:
        a(f"s_mov_b32 s{d}, s{lo}", f"s_and_b32 s{d+1}, s{hi}, 0xffff")
    a(f"s_mov_b32 s{d+2}, {nbytes}", f"s_mov_b32 s{d+3}, 0x20000")

def scan64(a,v):
    for sh in (1,2,4,8):
        a("s_nop 1", f"v_add_u32_dpp v{v}, v{v}, v{v} row_shr:{sh} row_mask:0xf bank_mask:0xf bound_ctrl:0")
    a("s_nop 1", f"v_add_u32_dpp v{v}, v{v}, v{v} row_bcast:15 row_mask:0xa bank_mask:0xf")
    a("s_nop 1", f"v_add_u32_dpp v{v}, v{v}, v{v} row_bcast:31 row_mask:0xc bank_mask:0xf")

class Stamps:
    def __init__(s,a,on,base,first,n): s.a=a; s.on=on; s.base=base; s.first=first; s.n=n
    def stamp(s,k,wait=False):
        if s.on:
            s.a(f"s_memrealtime s[{s.base+2*k}:{s.base+2*k+1}]")
            if wait: s.a("s_waitcnt lgkmcnt(0)")
    def store(s,wslo,vt,lbl):
        if not s.on: return
        a=s.a
        a("s_waitcnt lgkmcnt(0)", "s_mov_b64 exec, 1",
          f"s_lshl_b32 s{s.base-1}, s2, {(NSTAMP*8).bit_length()-1}",
          f"s_add_u32 s{s.base-1}, s{s.base-1}, {WS_STAMP+s.first*8:#x}",
          f"v_mov_b32 v{vt}, s{s.base-1}")
        for k in range(s.n):
            a(f"v_mov_b32 v{vt+2}, s{s.base+2*k}", f"v_mov_b32 v{vt+3}, s{s.base+2*k+1}",
              f"global_store_dwordx2 v{vt}, v[{vt+2}:{vt+3}], s[{wslo}:{wslo+1}] offset:{8*k}", "s_nop 1")

K1_HIST=0; K1_STAGE=1024; K1_WQ=K1_STAGE+PSTRIDE; K1_LDS=K1_WQ+8192
def gen_k1(o):
    a=Asm(); st=Stamps(a,o.stamps,64,0,4)
    nm="bin_kernel"
    a(head(nm))
    st.stamp(0)
    a("s_cmp_ge_u32 s2, 256", f"s_cbranch_scc1 {nm}_end")
    a("s_load_dwordx4 s[4:7], s[0:1], 0",
      "s_load_dwordx4 s[8:11], s[0:1], 16",
      "s_load_dwordx2 s[12:13], s[0:1], 32",
      "s_load_dwordx2 s[14:15], s[0:1], 56")
    a("v_lshrrev_b32 v1, 6, v0", "v_and_b32 v2, 63, v0", "v_readfirstlane_b32 s16, v1")
    a("s_cmp_ge_u32 s16, 13", f"s_cbranch_scc1 {nm}_side")
    a("v_mov_b32 v4, 0","v_mov_b32 v5, 0","v_mov_b32 v6, 0","v_mov_b32 v7, 0","v_lshlrev_b32 v3, 4, v0")
    a("s_cmp_lg_u32 s16, 0", f"s_cbranch_scc1 {nm}_nz", f"ds_write_b128 v3, v[4:7] offset:{K1_HIST}", f"{nm}_nz:")
    a(f"s_mul_i32 s17, s2, {PSTRIDE}")
    a(f"s_sub_u32 s18, {E*4}, s17", f"s_min_u32 s18, s18, {PSTRIDE}")
    a("v_add_u32 v8, s17, v3")
    a("v_mov_b32 v9, 1", "s_lshl_b32 s19, s2, 10", f"s_add_u32 s19, s19, {WS_T:#x}", "v_add_u32 v40, s19, v3")
    a("v_cmp_gt_u32 vcc, s18, v3", "s_and_saveexec_b64 s[20:21], vcc")
    a("s_waitcnt lgkmcnt(0)")
    a(f"s_cbranch_execz {nm}_noload")
    a("global_load_dwordx4 v[12:15], v8, s[8:9]", "global_load_dwordx4 v[16:19], v8, s[6:7]")
    a(f"{nm}_noload:")
    a("s_barrier")
    a("s_waitcnt vmcnt(1)")
    st.stamp(1)
    for e in range(4):
        a(f"v_lshlrev_b32_sdwa v{20+e}, 2, v{12+e} dst_sel:DWORD dst_unused:UNUSED_PAD src0_sel:DWORD src1_sel:BYTE_0")
        a(f"ds_add_rtn_u32 v{24+e}, v{20+e}, v9 offset:{K1_HIST}")
    for e in range(4):
        a(f"v_lshlrev_b32_sdwa v{12+e}, 2, v{12+e} dst_sel:DWORD dst_unused:UNUSED_PAD src0_sel:DWORD src1_sel:BYTE_1")
    a("s_waitcnt vmcnt(0)")
    for e in range(4):
        a(f"v_lshl_or_b32 v{16+e}, v{16+e}, 8, v{12+e}")
    a("s_waitcnt lgkmcnt(0)", "s_barrier")
    a("s_cmp_lg_u32 s16, 0", f"s_cbranch_scc1 {nm}_noscan")
    a(f"ds_read_b128 v[28:31], v3 offset:{K1_HIST}", "s_waitcnt lgkmcnt(0)")
    a("v_add_u32 v33, v28, v29", "v_add_u32 v34, v33, v30", "v_add_u32 v35, v34, v31", "v_mov_b32 v32, v35")
    scan64(a,32)
    a("v_sub_u32 v32, v32, v35",
      "v_add_u32 v35, v32, v34", "v_add_u32 v34, v32, v33", "v_add_u32 v33, v32, v28")
    for i in range(4): a(f"v_lshl_add_u32 v{36+i}, v{32+i}, 2, {K1_STAGE}" if K1_STAGE<=64 else f"v_lshlrev_b32 v{36+i}, 2, v{32+i}")
    a(f"ds_write_b128 v3, v[36:39] offset:{K1_HIST}")
    for i in range(4): a(f"v_lshl_or_b32 v{28+i}, v{28+i}, 16, v{32+i}")
    a(f"global_store_dwordx4 v40, v[28:31], s[14:15]{o.st1}")
    a("s_waitcnt lgkmcnt(0)")
    a(f"{nm}_noscan:", "s_barrier")
    for e in range(4): a(f"ds_read_b32 v{20+e}, v{20+e} offset:{K1_HIST}")
    for e in range(4):
        a(f"s_waitcnt lgkmcnt({3-e if e<3 else 0})" if False else (f"s_waitcnt lgkmcnt(3)" if e==0 else f"s_waitcnt lgkmcnt(3)"))
        a(f"v_lshl_add_u32 v{20+e}, v{24+e}, 2, v{20+e}", f"ds_write_b32 v{20+e}, v{16+e} offset:{K1_STAGE}")
    a("s_waitcnt lgkmcnt(0)", "s_barrier")
    st.stamp(2)
    a(f"ds_read_b128 v[12:15], v3 offset:{K1_STAGE}")
    a(f"s_cbranch_execz {nm}_nostore")
    a("s_waitcnt lgkmcnt(0)", f"global_store_dwordx4 v8, v[12:15], s[14:15]{o.st1}")
    a(f"{nm}_nostore:")
    if o.stamps:
        a("s_waitcnt vmcnt(0)"); st.stamp(3)
        a("s_cmp_lg_u32 s16, 0", f"s_cbranch_scc1 {nm}_end"); st.store(14,44,nm)
    a("s_endpgm")
    a(f"{nm}_side:")
    a("s_cmp_eq_u32 s16, 15", f"s_cbranch_scc1 {nm}_w15")
    a("v_and_b32 v3, 15, v2", "v_lshrrev_b32 v4, 4, v2")
    a("s_sub_u32 s17, s16, 13", "s_lshl_b32 s17, s17, 9", "s_add_u32 s17, s17, s2", "s_lshl_b32 s17, s17, 11")
    a("v_lshlrev_b32 v5, 7, v3", "v_add_u32 v5, s17, v5")
    a("v_lshl_add_u32 v6, v4, 4, v5")
    a(f"v_add_u32 v7, {256*2048}, v6")
    a("v_lshlrev_b32 v8, 4, v2", "v_add_u32 v9, 0x1000, v8")
    a(f"s_mov_b32 m0, {K1_WQ}")
    a("s_waitcnt lgkmcnt(0)")
    srd(a,24,4,5,N*128); srd(a,28,10,11,8192); srd(a,32,14,15,N*128,WS_Q)
    for i in range(4): a(f"buffer_load_dwordx4 v8, s[28:31], 0 offen offset:{1024*i} lds")
    a(f"s_mov_b32 m0, {K1_WQ+4096}", "s_nop 0")
    for i in range(4): a(f"buffer_load_dwordx4 v9, s[28:31], 0 offen offset:{1024*i} lds")
    a("buffer_load_dwordx4 v[12:15], v6, s[24:27], 0 offen", "buffer_load_dwordx4 v[16:19], v6, s[24:27], 0 offen offset:64",
      "buffer_load_dwordx4 v[20:23], v7, s[24:27], 0 offen", "buffer_load_dwordx4 v[24:27], v7, s[24:27], 0 offen offset:64")
    a("s_barrier")
    a("v_bfe_u32 v10, v2, 2, 2", "v_lshl_add_u32 v10, v4, 3, v10", "v_lshlrev_b32 v10, 7, v10", "v_and_b32 v11, 3, v2", "v_lshl_add_u32 v10, v11, 5, v10")
    a("v_lshl_add_u32 v6, v4, 5, v5", f"v_add_u32 v7, {256*2048}, v6")
    a("s_waitcnt vmcnt(4)")
    for T in range(4):
        for k in range(2):
            for hh in range(2):
                r=32+T*8+k*4+hh*2
                a(f"ds_read_b64_tr_b16 v[{r}:{r+1}], v10 offset:{K1_WQ+k*4096+hh*512+8*T}")
    a("s_waitcnt vmcnt(0) lgkmcnt(0)")
    for tile in range(2):
        for k in range(2):
            for T in range(4):
                d=64+tile*16+T*4; A=32+T*8+k*4; B=12+tile*8+k*4
                a(f"v_mfma_f32_16x16x32_bf16 v[{d}:{d+3}], v[{A}:{A+3}], v[{B}:{B+3}], "+("0" if k==0 else f"v[{d}:{d+3}]"))
    for tile in range(2):
        if tile==1: a("s_nop 3")
        for T in range(4):
            d=64+tile*16+T*4; r=12+tile*8+2*T
            a(f"v_cvt_pk_bf16_f32 v{r}, v{d}, v{d+1}", f"v_cvt_pk_bf16_f32 v{r+1}, v{d+2}, v{d+3}")
        r=12+tile*8
        a(f"buffer_store_dwordx4 v[{r}:{r+3}], v{6+tile}, s[32:35], 0 offen{o.stq}", f"buffer_store_dwordx4 v[{r+4}:{r+7}], v{6+tile}, s[32:35], 0 offen offset:16{o.stq}")
    a("s_endpgm")
    a(f"{nm}_w15:")
    a("s_lshr_b32 s17, s2, 3", "s_mul_i32 s17, s17, 50048", "v_lshlrev_b32 v5, 7, v2", "v_add_u32 v5, s17, v5")
    a("s_waitcnt lgkmcnt(0)")
    srd(a,24,4,5,N*128)
    a("s_cmp_ge_u32 s2, 8", f"s_cbranch_scc1 {nm}_nowv")
    srd(a,28,12,13,8192)
    a("v_and_b32 v3, 15, v2", "v_lshrrev_b32 v4, 4, v2", "v_and_b32 v6, 1, v4", "v_lshlrev_b32 v6, 11, v6",
      "v_lshrrev_b32 v4, 1, v4", "v_lshl_add_u32 v6, v4, 9, v6", "v_lshl_add_u32 v6, v3, 3, v6")
    a("s_and_b32 s18, s2, 1", "s_lshl_b32 s18, s18, 12", "s_lshr_b32 s19, s2, 1", "s_lshl_b32 s19, s19, 1", "s_add_u32 s18, s18, s19",
      "v_add_u32 v6, s18, v6")
    for e in range(8): a(f"buffer_load_ushort v{12+e}, v6, s[28:31], 0 offen offset:{(8*(e>>2)+(e&3))*128}")
    a("s_lshl_b32 s18, s2, 10", f"s_add_u32 s18, s18, {WS_WV:#x}", "v_lshlrev_b32 v7, 4, v2", "v_add_u32 v7, s18, v7")
    a("s_barrier", "s_waitcnt vmcnt(0)")
    for i in range(4): a(f"v_lshl_or_b32 v{20+i}, v{13+2*i}, 16, v{12+2*i}")
    a("global_store_dwordx4 v7, v[20:23], s[14:15]", f"s_branch {nm}_pf")
    a(f"{nm}_nowv:")
    a("s_barrier", f"{nm}_pf:")
    if o.pf:
        for i in range(7):
            a(f"buffer_load_dword v{8}, v5, s[24:27], 0 offen")
            if i<6: a(f"v_add_u32 v5, 0x2000, v5")
    a(f"{nm}_end:", "s_endpgm")
    return a.text()+kd(nm,96,80)

CNT=0; ACC=256; ACCS=272; QL=ACC+64*ACCS; WVL=QL+8192; LIST=WVL+8192; LCH=576; K2_LDS=LIST+LCH*64
def gen_k2(o):
    a=Asm(); st=Stamps(a,o.stamps,64,4,8)
    nm="gather_scatter__kernel_systems_refs_featgraph__graph_kernel"
    W=16
    a(head(nm)); st.stamp(0)
    a("s_cmp_ge_u32 s2, 256", f"s_cbranch_scc1 K2_end")
    a("s_load_dwordx2 s[4:5], s[0:1], 0", "s_load_dwordx2 s[6:7], s[0:1], 40", "s_load_dwordx2 s[8:9], s[0:1], 56")
    a("v_lshrrev_b32 v1, 6, v0", "v_lshlrev_b32 v64, 4, v0", "v_readfirstlane_b32 s16, v1")
    a("s_and_b32 s17, s2, 7", "s_lshl_b32 s17, s17, 5", "s_lshr_b32 s18, s2, 3", "s_or_b32 s17, s17, s18")
    for i in range(4): a(f"v_mov_b32 v{68+i}, 0", f"v_mov_b32 v{72+i}, {SENT:#x}")
    a("ds_write_b128 v64, v[68:71]", f"ds_write_b128 v64, v[72:75] offset:{LIST}")
    a(f"v_cmp_gt_u32 vcc, {QL-16384}, v64", "s_and_saveexec_b64 s[20:21], vcc", "ds_write_b128 v64, v[68:71] offset:16384", "s_mov_b64 exec, s[20:21]")
    a("v_lshrrev_b32 v65, 2, v0", "s_lshl_b32 s18, s17, 2", f"s_add_u32 s18, s18, {WS_T:#x}", "v_lshl_add_u32 v66, v65, 10, s18")
    a("v_and_b32 v67, 63, v0")
    a("s_cmp_ge_u32 s16, 8", "s_cbranch_scc1 K2_wvdma")
    a("v_lshrrev_b32 v76, 3, v0", "v_lshlrev_b32 v76, 15, v76", "v_and_b32 v77, 7, v0", "v_lshl_add_u32 v76, v77, 4, v76", "s_lshl_b32 s19, s17, 7", "v_add_u32 v76, s19, v76")
    a("s_lshl_b32 s19, s16, 10", f"s_add_u32 s19, s19, {QL}", "s_mov_b32 m0, s19")
    a("s_waitcnt lgkmcnt(0)")
    a("global_load_dword v2, v66, s[8:9]")
    srd(a,24,8,9,N*128,WS_Q)
    a("s_branch K2_dma")
    a("K2_wvdma:")
    a("v_subrev_u32 v76, 0x2000, v64")
    a("s_lshl_b32 s19, s16, 10", f"s_add_u32 s19, s19, {WVL-8192}", "s_mov_b32 m0, s19")
    a("s_waitcnt lgkmcnt(0)")
    a("global_load_dword v2, v66, s[8:9]")
    srd(a,24,8,9,8192,WS_WV)
    a("K2_dma:")
    a("buffer_load_dwordx4 v76, s[24:27], 0 offen lds")
    st.stamp(1)
    srd(a,12,4,5,N*128)
    a("v_and_b32 v66, 3, v0", "v_lshlrev_b32 v1, 4, v66")
    a("v_bfe_u32 v5, v0, 2, 4")
    a("s_mov_b32 s22, 0xaaaaaaaa", "s_mov_b32 s23, 0xaaaaaaaa", "s_mov_b32 s28, 0xcccccccc", "s_mov_b32 s29, 0xcccccccc")
    a("v_mov_b32 v3, 0xffff", "v_mov_b32 v4, 0xffff0000", "v_cndmask_b32 v4, v3, v4, s[22:23]", "v_mov_b32 v67, 0",
      "v_cndmask_b32 v3, v4, v67, s[28:29]", "v_cndmask_b32 v4, v67, v4, s[28:29]")
    a("s_mov_b32 s30, 0xbe38aa3b")
    a(f"s_mov_b32 s31, {PSTRIDE}", "v_mul_u32_u24 v62, s31, v65", "v_add_u32 v62, v62, v1")
    a("v_lshlrev_b32 v63, 2, v66")
    a("s_mov_b32 s33, 0")
    a("v_mov_b32 v61, 1")
    a("s_waitcnt vmcnt(1)")
    st.stamp(2)
    a("K2_batch:")
    a("v_and_b32 v64, 0xffff, v2", "v_lshrrev_b32 v65, 16, v2", "v_add_u32 v64, s33, v64", "v_lshl_add_u32 v64, v64, 2, v62")
    a("global_load_dwordx4 v[68:71], v64, s[8:9]", "global_load_dwordx4 v[72:75], v64, s[8:9] offset:64")
    a("v_subrev_u32 v65, s33, v65")
    a("v_cmp_lt_i32 vcc, 32, v65", "v_sub_u32 v65, v65, v63")
    a("s_waitcnt lgkmcnt(0)", "s_barrier")
    a("s_cbranch_vccz K2_noflag", "v_mov_b32 v66, 0x40000000", "v_mov_b32 v67, 252", "ds_or_b32 v67, v66", "K2_noflag:")
    a("s_waitcnt vmcnt(0)")
    st.stamp(3)
    for s in range(2):
        for e in range(4):
            r=68+4*s+e
            a(f"v_and_b32 v{r+8}, 0xff, v{r}")
        for e in range(4):
            r=68+4*s+e
            a(f"v_cmpx_lt_i32 vcc, {16*s+e}, v65", f"ds_add_rtn_u32 v{r+16}, v{r+8}, v61")
        a("s_mov_b64 exec, -1")
    for r in range(68,76): a(f"v_lshrrev_b32 v{r}, 1, v{r}")
    a("v_and_b32 v66, 63, v0", "v_lshlrev_b32 v66, 2, v66")
    a("s_waitcnt lgkmcnt(0)", "s_barrier")
    a("ds_read_b32 v67, v66", "s_waitcnt lgkmcnt(0)")
    a("v_readlane_b32 s34, v67, 63", "v_and_b32 v67, 0xffff, v67", "v_add_u32 v67, 15, v67", "v_lshrrev_b32 v67, 4, v67", "v_mov_b32 v66, v67")
    scan64(a,66)
    a("v_sub_u32 v67, v66, v67", "v_lshlrev_b32 v67, 6, v67", "v_readlane_b32 s35, v66, 63")
    for r in range(76,84): a(f"ds_bpermute_b32 v{r}, v{r}, v67")
    a("s_add_u32 s35, s35, 15", "s_lshr_b32 s35, s35, 4")
    a("s_cmp_gt_u32 s35, 16", "s_cbranch_scc1 K2_bigfill", "K2_fillback:")
    a("s_waitcnt lgkmcnt(0)")
    for r in range(76,84): a(f"v_lshl_add_u32 v{r}, v{r+8}, 2, v{r}")
    for s in range(2):
        for e in range(4):
            r=68+4*s+e
            a(f"v_cmpx_lt_i32 vcc, {16*s+e}, v65", f"ds_write_b32 v{r+8}, v{r} offset:{LIST}")
        a("s_mov_b64 exec, -1")
    a("v_mul_u32_u24 v60, s35, v5", "s_mov_b32 s36, s16", "v_add_u32 v60, s36, v60", "v_lshlrev_b32 v60, 6, v60")
    a("s_waitcnt lgkmcnt(0)", "s_barrier")
    st.stamp(4)
    a("K2_round:")
    a("s_cmp_ge_u32 s36, s35", "s_cbranch_scc1 K2_rdone")
    a(f"ds_read_b128 v[8:11], v60 offset:{LIST}", f"ds_read_b128 v[12:15], v60 offset:{LIST+16}")
    a("s_waitcnt lgkmcnt(1)")
    a("v_and_b32 v56, 127, v8", "v_sub_u32 v6, v1, v56")
    XB=64
    def loads(ms,ereg):
        b=XB+32*(ms&1)
        for t in range(4):
            a(f"v_add_u32 v{ereg+t}, v{ereg+t}, v6")
            a(f"buffer_load_dwordx4 v[{b+8*t}:{b+8*t+3}], v{ereg+t}, s[12:15], 0 offen",
              f"buffer_load_dwordx4 v[{b+8*t+4}:{b+8*t+7}], v{ereg+t}, s[12:15], 0 offen offset:64")
    loads(0,8)
    a("v_lshl_add_u32 v57, v56, 6, v1")
    a(f"ds_read_b128 v[16:19], v57 offset:{QL}", f"ds_read_b128 v[20:23], v57 offset:{QL+64}")
    a("s_waitcnt lgkmcnt(2)")
    loads(1,12)
    a(f"ds_read_b128 v[8:11], v60 offset:{LIST+32}", f"ds_read_b128 v[12:15], v60 offset:{LIST+48}")
    a(f"v_mul_u32_u24 v7, {ACCS//2}, v56" if ACCS//2<=64 else f"v_mul_u32_u24 v7, {ACCS//2}, v56", "v_add_u32 v7, v7, v63")
    def compute(ms):
        b=XB+32*(ms&1)
        for z in range(4):
            for t in range(4):
                A=b+8*t+2*z; D=40+4*t
                a(f"v_mfma_f32_4x4x4_16b_bf16 v[{D}:{D+3}], v[{A}:{A+1}], v[{16+2*z}:{17+2*z}], "+("0" if z==0 else f"v[{D}:{D+3}]"))
        a("s_nop 1")
        for k in range(3):
            for t in range(4):
                j=[x for x in range(4) if x!=t][k]
                src1 = f"v{40+4*t+t}" if k==0 else f"v{56+t}"
                a(f"v_add_f32_dpp v{56+t}, v{40+4*t+j}, {src1} quad_perm:[{j},{j},{j},{j}] row_mask:0xf bank_mask:0xf")
        a("v_cndmask_b32 v56, v56, v57, s[22:23]", "v_cndmask_b32 v58, v58, v59, s[22:23]", "v_cndmask_b32 v56, v56, v58, s[28:29]")
        a("v_mul_f32 v56, s30, v56", "v_exp_f32 v56, v56", "s_nop 0", "v_add_f32 v56, 1.0, v56", "v_rcp_f32 v56, v56", "s_nop 0",
          "v_cvt_pk_bf16_f32 v56, v56, v56", "s_nop 1")
        for t in range(4):
            a(f"v_and_b32_dpp v{40+2*t}, v56, v3 quad_perm:[{t},{t},{t},{t}] row_mask:0xf bank_mask:0xf",
              f"v_and_b32_dpp v{41+2*t}, v56, v4 quad_perm:[{t},{t},{t},{t}] row_mask:0xf bank_mask:0xf")
        for t in range(4):
            for z in range(4):
                A=b+8*t+2*z; D=24+4*z
                a(f"v_mfma_f32_4x4x4_16b_bf16 v[{D}:{D+3}], v[{A}:{A+1}], v[{40+2*t}:{41+2*t}], "+("0" if (ms==0 and t==0) else f"v[{D}:{D+3}]"))
    a("s_waitcnt vmcnt(8) lgkmcnt(0)")
    compute(0); loads(2,8)
    a("s_waitcnt vmcnt(8)")
    compute(1); loads(3,12)
    a("s_waitcnt vmcnt(8)")
    compute(2)
    a("s_waitcnt vmcnt(0)")
    compute(3)
    a(f"s_add_u32 s36, s36, {W}", f"v_add_u32 v60, {W*64}, v60")
    for z in range(4):
        for j in range(4):
            a(f"ds_add_f32 v7, v{24+4*z+j} offset:{ACC+64*z+16*j}")
    a("s_branch K2_round")
    a("K2_rdone:")
    st.stamp(5)
    a("s_cmp_lg_u32 s34, 0", "s_cbranch_scc1 K2_next")
    a("s_cmp_ge_u32 s16, 4", "s_cbranch_scc1 K2_wait_end")
    a("v_and_b32 v8, 63, v0", "v_lshlrev_b32 v9, 4, v8")
    for f in range(8): a(f"ds_read_b128 v[{64+4*f}:{67+4*f}], v9 offset:{WVL+1024*f}")
    a("v_and_b32 v10, 15, v0", "v_bfe_u32 v11, v0, 4, 2", "v_lshrrev_b32 v12, 6, v0", "v_lshl_add_u32 v13, v12, 4, v10",
      f"v_mul_u32_u24 v13, {ACCS}, v13", "v_lshl_add_u32 v13, v11, 5, v13")
    a("v_lshl_add_u32 v14, v12, 2, v11", "v_lshlrev_b32 v14, 17, v14", "v_lshl_add_u32 v14, v10, 3, v14", "s_lshl_b32 s19, s17, 7", "v_add_u32 v14, s19, v14")
    for i in range(1,4): a(f"v_add_u32 v{14+i}, {32768*i:#x}, v14")
    srd(a,24,6,7,N*128)
    a("s_waitcnt lgkmcnt(0)", "s_barrier")
    st.stamp(6)
    for k in range(2):
        for hh in range(2):
            r=24+8*k+4*hh
            a(f"ds_read_b128 v[{r}:{r+3}], v13 offset:{ACC+128*k+16*hh}")
    for k in range(2):
        a(f"s_waitcnt lgkmcnt({2-2*k})")
        for i in range(4): a(f"v_cvt_pk_bf16_f32 v{40+4*k+i}, v{24+8*k+2*i}, v{25+8*k+2*i}")
    a("s_nop 1")
    for k in range(2):
        for T in range(4):
            B=64+4*(2*T+k); D=96+4*T
            a(f"v_mfma_f32_16x16x32_bf16 v[{D}:{D+3}], v[{40+4*k}:{43+4*k}], v[{B}:{B+3}], "+("0" if k==0 else f"v[{D}:{D+3}]"))
    a("s_nop 7")
    for i in range(4):
        a(f"v_cvt_pk_bf16_f32 v{24+2*i}, v{96+i}, v{100+i}", f"v_cvt_pk_bf16_f32 v{25+2*i}, v{104+i}, v{108+i}")
        a(f"buffer_store_dwordx2 v[{24+2*i}:{25+2*i}], v{14+i}, s[24:27], 0 offen")
    if o.stamps:
        a("s_waitcnt vmcnt(0)"); st.stamp(7)
        a("s_cmp_lg_u32 s16, 0", "s_cbranch_scc1 K2_end"); st.store(8,44,nm)
    a("s_endpgm")
    a("K2_wait_end:", "s_waitcnt lgkmcnt(0)", "s_barrier")
    a("K2_end:", "s_endpgm")
    a("K2_bigfill:")
    a("v_lshlrev_b32 v64, 4, v0")
    for i in range(4): a(f"v_mov_b32 v{92+i}, {SENT:#x}")
    a(f"ds_write_b128 v64, v[92:95] offset:{LIST+16384}")
    a(f"v_cmp_gt_u32 vcc, {LCH*64-32768}, v64", "s_and_saveexec_b64 s[20:21], vcc", f"v_add_u32 v64, {LIST+32768}, v64", "ds_write_b128 v64, v[92:95]", "s_mov_b64 exec, s[20:21]")
    a("s_waitcnt lgkmcnt(0)", "s_barrier", "s_branch K2_fillback")
    a("K2_next:")
    a("s_waitcnt lgkmcnt(0)", "s_barrier")
    a("v_lshlrev_b32 v64, 4, v0")
    for i in range(4): a(f"v_mov_b32 v{68+i}, 0", f"v_mov_b32 v{72+i}, {SENT:#x}")
    a(f"ds_write_b128 v64, v[72:75] offset:{LIST}")
    a("v_cmp_gt_u32 vcc, 256, v64", "s_and_saveexec_b64 s[20:21], vcc", "ds_write_b128 v64, v[68:71]", "s_mov_b64 exec, s[20:21]")
    a("s_add_u32 s33, s33, 32", "s_branch K2_batch")
    return a.text()+kd(nm,128,96)

HDR="""; gather_scatter (FeatGraph-style SDDMM + SpMM) - two launches:
; @launch kernel=bin_kernel grid=(256,1,1) block=(1024,1,1) lds=%d
; @launch kernel=gather_scatter__kernel_systems_refs_featgraph__graph_kernel grid=(256,1,1) block=(1024,1,1) lds=%d
.amdgcn_target "amdgcn-amd-amdhsa--gfx950"
.text
"""
if __name__=="__main__":
    ap=argparse.ArgumentParser()
    ap.add_argument("-o",default="k.s"); ap.add_argument("--stamps",action="store_true")
    ap.add_argument("--pf",type=int,default=1); ap.add_argument("--st1",default=""); ap.add_argument("--stq",default="")
    o=ap.parse_args()
    if o.st1: o.st1=" "+o.st1
    if o.stq: o.stq=" "+o.stq
    txt=HDR%(K1_LDS,K2_LDS)+gen_k1(o)+gen_k2(o)
    open(o.o,"w").write(txt)
    build(o.o,o.o.replace(".s",".co"))
    print("built",o.o,"K1 lds",K1_LDS,"K2 lds",K2_LDS)
```

```python
import sys, argparse
from build import build
from gen import Asm, kd, head, srd, scan64, Stamps, N, E, EPW, PSTRIDE, WS_T, WS_WV, WS_STAMP, NSTAMP
SENT=0x7FFFFF80

K1_HIST=0; K1_STAGE=1024; K1_LDS=K1_STAGE+PSTRIDE
def gen_k1(o):
    a=Asm(); st=Stamps(a,o.stamps,64,0,6)
    nm="bin_kernel"
    a(head(nm)); st.stamp(0)
    a("s_cmp_ge_u32 s2, 256", f"s_cbranch_scc1 {nm}_side")
    a("s_load_dwordx4 s[4:7], s[0:1], 0",
      "s_load_dwordx2 s[8:9], s[0:1], 16",
      "s_load_dwordx2 s[14:15], s[0:1], 56")
    a("v_lshrrev_b32 v1, 6, v0", "v_lshlrev_b32 v3, 4, v0", "v_readfirstlane_b32 s16, v1")
    a("v_mov_b32 v4, 0","v_mov_b32 v5, 0","v_mov_b32 v6, 0","v_mov_b32 v7, 0")
    a("s_cmp_lg_u32 s16, 0", f"s_cbranch_scc1 {nm}_nz", f"ds_write_b128 v3, v[4:7] offset:{K1_HIST}", f"{nm}_nz:")
    a(f"s_mul_i32 s17, s2, {PSTRIDE}")
    a(f"s_sub_u32 s18, {E*4}, s17", f"s_min_u32 s18, s18, {PSTRIDE}")
    a("v_add_u32 v8, s17, v3")
    a("v_mov_b32 v9, 1", "s_lshl_b32 s19, s2, 10", f"s_add_u32 s19, s19, {WS_T:#x}", "v_add_u32 v40, s19, v3")
    a("s_lshr_b32 s19, s2, 3", "s_mul_i32 s19, s19, 50048", "v_lshlrev_b32 v10, 7, v0", "v_add_u32 v10, s19, v10",
      "v_cmp_gt_u32 vcc, 391, v0", "v_mov_b32 v11, 0x7ffffff0", "s_nop 0", "v_cndmask_b32 v10, v11, v10, vcc")
    a("v_cmp_gt_u32 vcc, s18, v3", "s_and_saveexec_b64 s[20:21], vcc")
    a("s_waitcnt lgkmcnt(0)")
    a(f"s_cbranch_execz {nm}_noload")
    a("global_load_dwordx4 v[12:15], v8, s[8:9]", "global_load_dwordx4 v[16:19], v8, s[6:7]")
    a(f"{nm}_noload:")
    st.stamp(1)
    def prefetch(lbl):
        srd(a,24,4,5,N*128)
        a("s_mov_b64 s[22:23], exec", "s_mov_b64 exec, -1")
        a("s_cmp_ge_u32 s16, 7", f"s_cbranch_scc1 {lbl}", "buffer_load_dword v11, v10, s[24:27], 0 offen", f"{lbl}:", "s_mov_b64 exec, s[22:23]")
    if o.pf==1:
        srd(a,24,4,5,N*128)
        a("s_mov_b64 s[22:23], exec", "s_mov_b64 exec, -1")
        a("buffer_load_dword v11, v10, s[24:27], 0 offen", "s_mov_b64 exec, s[22:23]")
    a("s_barrier")
    a(f"s_waitcnt vmcnt({2 if o.pf==1 else 1})")
    st.stamp(2)
    for e in range(4):
        a(f"v_lshlrev_b32_sdwa v{20+e}, 2, v{12+e} dst_sel:DWORD dst_unused:UNUSED_PAD src0_sel:DWORD src1_sel:BYTE_0")
        a(f"ds_add_rtn_u32 v{24+e}, v{20+e}, v9 offset:{K1_HIST}")
    for e in range(4):
        a(f"v_lshlrev_b32_sdwa v{12+e}, 2, v{12+e} dst_sel:DWORD dst_unused:UNUSED_PAD src0_sel:DWORD src1_sel:BYTE_1")
    a(f"s_waitcnt vmcnt({1 if o.pf==1 else 0})")
    if o.pf==2: prefetch(f"{nm}_pf2")
    for e in range(4):
        a(f"v_lshl_or_b32 v{16+e}, v{16+e}, 8, v{12+e}")
    a("s_waitcnt lgkmcnt(0)", "s_barrier")
    st.stamp(3)
    a("s_cmp_lg_u32 s16, 0", f"s_cbranch_scc1 {nm}_noscan")
    a(f"ds_read_b128 v[28:31], v3 offset:{K1_HIST}", "s_waitcnt lgkmcnt(0)")
    a("v_add_u32 v33, v28, v29", "v_add_u32 v34, v33, v30", "v_add_u32 v35, v34, v31", "v_mov_b32 v32, v35")
    scan64(a,32)
    a("v_sub_u32 v32, v32, v35", "v_add_u32 v35, v32, v34", "v_add_u32 v34, v32, v33", "v_add_u32 v33, v32, v28")
    for i in range(4): a(f"v_lshlrev_b32 v{36+i}, 2, v{32+i}")
    a(f"ds_write_b128 v3, v[36:39] offset:{K1_HIST}")
    for i in range(4): a(f"v_lshl_or_b32 v{28+i}, v{28+i}, 16, v{32+i}")
    a(f"global_store_dwordx4 v40, v[28:31], s[14:15]{o.st1}")
    a("s_waitcnt lgkmcnt(0)")
    a(f"{nm}_noscan:", "s_barrier")
    for e in range(4): a(f"ds_read_b32 v{20+e}, v{20+e} offset:{K1_HIST}")
    for e in range(4):
        a("s_waitcnt lgkmcnt(3)")
        a(f"v_lshl_add_u32 v{20+e}, v{24+e}, 2, v{20+e}", f"ds_write_b32 v{20+e}, v{16+e} offset:{K1_STAGE}")
    a("s_waitcnt lgkmcnt(0)", "s_barrier")
    st.stamp(4)
    a(f"ds_read_b128 v[12:15], v3 offset:{K1_STAGE}")
    a(f"s_cbranch_execz {nm}_nostore")
    a("s_waitcnt lgkmcnt(0)", f"global_store_dwordx4 v8, v[12:15], s[14:15]{o.st1}")
    a(f"{nm}_nostore:")
    if o.stamps:
        a("s_waitcnt vmcnt(0)"); st.stamp(5)
        a("s_cmp_lg_u32 s16, 0", f"s_cbranch_scc1 {nm}_end"); st.store(14,44,nm)
    a("s_endpgm")
    a(f"{nm}_side:")
    a("s_cmp_lg_u32 s2, 256", f"s_cbranch_scc1 {nm}_end")
    a("s_load_dwordx2 s[12:13], s[0:1], 32", "s_load_dwordx2 s[14:15], s[0:1], 56")
    a("v_lshrrev_b32 v1, 6, v0", "v_and_b32 v2, 63, v0", "v_readfirstlane_b32 s16, v1")
    a("s_cmp_ge_u32 s16, 8", f"s_cbranch_scc1 {nm}_end")
    a("v_and_b32 v3, 15, v2", "v_lshrrev_b32 v4, 4, v2", "v_lshlrev_b32 v6, 8, v4", "v_lshl_add_u32 v6, v3, 3, v6")
    a("s_and_b32 s18, s16, 1", "s_lshl_b32 s18, s18, 12", "s_and_b32 s19, s16, 6", "s_add_u32 s18, s18, s19", "v_add_u32 v6, s18, v6")
    a(f"v_lshlrev_b32 v7, 4, v0", f"v_add_u32 v7, {WS_WV:#x}, v7")
    a("s_waitcnt lgkmcnt(0)")
    srd(a,28,12,13,8192)
    for e in range(8): a(f"buffer_load_ushort v{12+e}, v6, s[28:31], 0 offen offset:{(8*(e&3)+(e>>2))*128}")
    a("s_waitcnt vmcnt(0)")
    for i in range(4): a(f"v_lshl_or_b32 v{20+i}, v{13+2*i}, 16, v{12+2*i}")
    a("global_store_dwordx4 v7, v[20:23], s[14:15]")
    a(f"{nm}_end:", "s_endpgm")
    return a.text()+kd(nm,48,80)

CNT=0; AGG=256; RS=144; QL=AGG+64*RS; WQL=QL+64*RS; LIST=WQL+8192; LS=528; CAP=128; LISTB=49*LS
SPILL=(LIST+LISTB+15)//16*16; K2_LDS=SPILL+65536
def gen_k2(o):
    a=Asm(); st=Stamps(a,o.stamps,64,6,10)
    nm="gather_scatter__kernel_systems_refs_featgraph__graph_kernel"
    XB=64
    def fill_list(vaddr,vd):
        a(f"ds_write_b128 v{vaddr}, v[{vd}:{vd+3}] offset:{LIST}")
        a(f"v_cmp_gt_u32 vcc, {LISTB-16384}, v{vaddr}", "s_and_saveexec_b64 s[20:21], vcc", f"ds_write_b128 v{vaddr}, v[{vd}:{vd+3}] offset:{LIST+16384}", "s_mov_b64 exec, s[20:21]")
    a(head(nm)); st.stamp(0)
    a("s_cmp_ge_u32 s2, 256", f"s_cbranch_scc1 K2_end")
    a("s_load_dwordx2 s[4:5], s[0:1], 0", "s_load_dwordx2 s[10:11], s[0:1], 24", "s_load_dwordx2 s[6:7], s[0:1], 40", "s_load_dwordx2 s[8:9], s[0:1], 56")
    a("v_lshrrev_b32 v1, 6, v0", "v_lshlrev_b32 v56, 4, v0", "v_readfirstlane_b32 s16, v1")
    a("s_and_b32 s17, s2, 7", "s_lshl_b32 s17, s17, 5", "s_lshr_b32 s18, s2, 3", "s_or_b32 s17, s17, s18")
    a("v_lshrrev_b32 v57, 2, v0", "s_lshl_b32 s18, s17, 2", f"s_add_u32 s18, s18, {WS_T:#x}", "v_lshl_add_u32 v58, v57, 10, s18")
    a("v_and_b32 v59, 15, v0", "v_bfe_u32 v60, v0, 4, 2", "v_bfe_u32 v61, v0, 6, 2", "v_lshl_add_u32 v59, v61, 4, v59")
    a("v_lshlrev_b32 v61, 15, v59", "v_lshl_add_u32 v61, v60, 4, v61", "s_lshl_b32 s19, s17, 7", "v_add_u32 v61, s19, v61")
    a("s_lshl_b32 s18, s16, 10", f"s_add_u32 s18, s18, {WQL}", "s_mov_b32 m0, s18")
    for i in range(4): a(f"v_mov_b32 v{40+i}, 0", f"v_mov_b32 v{44+i}, {SENT:#x}")
    a("s_waitcnt lgkmcnt(0)")
    a("global_load_dword v2, v58, s[8:9]")
    srd(a,12,4,5,N*128)
    a("s_cmp_ge_u32 s16, 8", "s_cbranch_scc1 K2_nodma")
    srd(a,24,10,11,8192)
    a("buffer_load_dwordx4 v56, s[24:27], 0 offen lds", "s_branch K2_pre")
    a("K2_nodma:")
    a("s_cmp_lt_u32 s16, 12", "s_cbranch_scc1 K2_pre")
    a("buffer_load_dwordx4 v[96:99], v61, s[12:15], 0 offen", "buffer_load_dwordx4 v[100:103], v61, s[12:15], 0 offen offset:64")
    a("K2_pre:")
    st.stamp(1)
    a("v_cmp_gt_u32 vcc, 256, v56", "s_and_saveexec_b64 s[20:21], vcc", "ds_write_b128 v56, v[40:43]", "s_mov_b64 exec, s[20:21]")
    fill_list(56,44)
    a("v_and_b32 v58, 3, v0", "v_lshlrev_b32 v1, 4, v58")
    a("s_mov_b32 s22, 0xaaaaaaaa", "s_mov_b32 s23, 0xaaaaaaaa", "s_mov_b32 s28, 0xcccccccc", "s_mov_b32 s29, 0xcccccccc")
    a("v_mov_b32 v3, 0xffff", "v_mov_b32 v4, 0xffff0000", "v_cndmask_b32 v4, v3, v4, s[22:23]",
      "v_cndmask_b32 v3, v4, v40, s[28:29]", "v_cndmask_b32 v4, v40, v4, s[28:29]")
    a("s_mov_b32 s30, 0xbe38aa3b", f"s_mov_b32 s31, {PSTRIDE}", "v_mul_u32_u24 v62, s31, v57", "v_add_u32 v62, v62, v1")
    a("v_lshlrev_b32 v63, 2, v58")
    a("s_mov_b32 s33, 0", "s_mov_b32 s37, 0", f"s_mov_b32 s31, {LS//4}")
    a("v_lshrrev_b32 v7, 4, v0", "v_min_u32 v6, 48, v7")
    a(f"v_mul_u32_u24 v5, {LS}, v6", "v_bfe_u32 v56, v0, 2, 2", "v_lshl_add_u32 v5, v56, 2, v5")
    a("v_sub_u32 v56, v7, v6", "v_lshl_add_u32 v5, v56, 6, v5")
    a("v_lshlrev_b32 v6, 1, v6", "v_sub_u32 v6, v1, v6")
    for r in range(24,40): a(f"v_mov_b32 v{r}, 0")
    for r in range(XB,XB+32): a(f"v_mov_b32 v{r}, 0")
    a("s_cmp_lt_u32 s16, 12", "s_cbranch_scc1 K2_w1", "s_waitcnt vmcnt(2)", "s_branch K2_batch", "K2_w1:", "s_waitcnt vmcnt(1)")
    a("s_cmp_lt_u32 s16, 8", "s_cbranch_scc1 K2_batch", "s_waitcnt vmcnt(0)")
    a("K2_batch:")
    st.stamp(2)
    a("v_and_b32 v56, 0xffff, v2", "v_lshrrev_b32 v57, 16, v2", "v_add_u32 v56, s33, v56", "v_lshl_add_u32 v56, v56, 2, v62")
    a("global_load_dwordx4 v[40:43], v56, s[8:9]", "global_load_dwordx4 v[44:47], v56, s[8:9] offset:64")
    a("v_subrev_u32 v57, s33, v57")
    a("v_cmp_lt_i32 vcc, 32, v57", "v_sub_u32 v57, v57, v63", "v_mov_b32 v58, 1")
    a("s_waitcnt vmcnt(2) lgkmcnt(0)", "s_barrier")
    a("s_cbranch_vccz K2_noflag", "v_mov_b32 v16, 0x40000000", "v_mov_b32 v17, 252", "ds_or_b32 v17, v16", "K2_noflag:")
    a("s_cmp_lt_u32 s16, 12", "s_cbranch_scc1 K2_noq", "s_cmp_lg_u32 s33, 0", "s_cbranch_scc1 K2_noq")
    a("v_bfe_u32 v16, v0, 2, 2", "v_lshl_add_u32 v16, v60, 3, v16", "v_lshlrev_b32 v16, 7, v16", "v_lshl_add_u32 v16, v63, 3, v16")
    for k in range(2):
        for T in range(4):
            for hh in range(2):
                r=64+T*8+k*4+hh*2
                a(f"ds_read_b64_tr_b16 v[{r}:{r+1}], v16 offset:{WQL+k*4096+hh*512+8*T}")
    a(f"v_mul_u32_u24 v17, {RS}, v59", "v_lshl_add_u32 v17, v60, 5, v17")
    for k in range(2):
        a(f"s_waitcnt lgkmcnt({8-8*k})")
        for T in range(4):
            d=104+T*4; A=64+T*8+k*4; B=96+k*4
            a(f"v_mfma_f32_16x16x32_bf16 v[{d}:{d+3}], v[{A}:{A+3}], v[{B}:{B+3}], "+("0" if k==0 else f"v[{d}:{d+3}]"))
    for r in range(XB,XB+32): a(f"v_mov_b32 v{r}, 0")
    for T in range(4):
        d=104+T*4; r=96+2*T
        a(f"v_cvt_pk_bf16_f32 v{r}, v{d}, v{d+1}", f"v_cvt_pk_bf16_f32 v{r+1}, v{d+2}, v{d+3}")
    a(f"ds_write_b128 v17, v[96:99] offset:{QL}", f"ds_write_b128 v17, v[100:103] offset:{QL+16}")
    a("K2_noq:")
    a("s_waitcnt vmcnt(1)")
    st.stamp(3)
    for s in range(2):
        if s==1: a("s_waitcnt vmcnt(0)")
        for e in range(4):
            r=40+4*s+e
            a(f"v_and_b32 v{r+8}, 0xff, v{r}")
        for e in range(4):
            r=40+4*s+e
            a(f"v_cmpx_lt_i32 vcc, {16*s+e}, v57")
            if s==1: a(f"s_cbranch_execz K2_at_done")
            a(f"ds_add_rtn_u32 v{8+4*s+e}, v{r+8}, v58")
        if s==1: a("K2_at_done:")
        a("s_mov_b64 exec, -1")
    for r in range(40,48): a(f"v_lshrrev_b32 v{r}, 1, v{r}", f"v_mul_u32_u24 v{r+8}, s31, v{r+8}")
    def scatter(tag):
        for s in range(2):
            for e in range(4):
                r=40+4*s+e
                a(f"v_cmpx_lt_i32 vcc, {16*s+e}, v57")
                if s==1: a(f"s_cbranch_execz K2_sc_done{tag}")
                a(f"v_lshl_add_u32 v{r+8}, v{8+4*s+e}, 2, v{r+8}", f"ds_write_b32 v{r+8}, v{r} offset:{LIST}")
            if s==1: a(f"K2_sc_done{tag}:")
            a("s_mov_b64 exec, -1")
    a("s_waitcnt lgkmcnt(0)")
    scatter("")
    a("v_and_b32 v56, 63, v0", "v_lshlrev_b32 v56, 2, v56", "v_min_u32 v59, 48, v7", f"v_mul_u32_u24 v60, {RS}, v59", "v_add_u32 v60, v60, v1", "v_lshlrev_b32 v59, 2, v59")
    a("s_waitcnt lgkmcnt(0)", "s_barrier")
    st.stamp(4)
    a("ds_read_b32 v56, v56", "ds_read_b32 v59, v59")
    a(f"ds_read_b128 v[16:19], v60 offset:{QL}", f"ds_read_b128 v[20:23], v60 offset:{QL+64}")
    a("s_waitcnt lgkmcnt(3)")
    a("v_readlane_b32 s34, v56, 63", "v_and_b32 v56, 0xffff, v56", f"v_cmp_lt_u32 vcc, {CAP}, v56" if CAP<=64 else f"s_movk_i32 s35, {CAP}\nv_cmp_lt_u32 vcc, s35, v56")
    a("s_cbranch_vccnz K2_ovf")
    a("s_mov_b32 s38, 0")
    a("K2_pass:")
    a("s_cmp_gt_u32 s16, 12", "s_cbranch_scc1 K2_rdone")
    a("s_waitcnt lgkmcnt(2)")
    a("v_readlane_b32 s35, v59, 0", "v_readlane_b32 s36, v59, 16", "v_readlane_b32 s39, v59, 32", "v_readlane_b32 s40, v59, 48")
    a("s_max_u32 s35, s35, s36", "s_max_u32 s39, s39, s40", "s_max_u32 s35, s35, s39")
    a("s_sub_i32 s35, s35, s37", "s_max_i32 s35, s35, 0", f"s_min_u32 s35, s35, {CAP}")
    a("s_movk_i32 s41, 64")
    a("s_cmp_lg_u32 s16, 12", "s_cbranch_scc1 K2_norm")
    a("s_and_b32 s36, s35, 63", "s_min_u32 s36, s36, 16", "s_lshr_b32 s35, s35, 6", "s_lshl_b32 s35, s35, 4", "s_add_u32 s35, s35, s36", "s_movk_i32 s41, 256")
    a("K2_norm:")
    if o.prio==1:
        a("s_cmp_lt_u32 s16, 4", "s_cbranch_scc0 K2_p1", "s_setprio 3", "s_branch K2_pd", "K2_p1:", "s_cmp_lt_u32 s16, 8", "s_cbranch_scc0 K2_pd", "s_setprio 2", "K2_pd:")
    if o.prio==2:
        a("s_cmp_ge_u32 s16, 8", "s_cbranch_scc0 K2_p1", "s_setprio 3", "s_branch K2_pd", "K2_p1:", "s_cmp_ge_u32 s16, 4", "s_cbranch_scc0 K2_pd", "s_setprio 2", "K2_pd:")
    a("s_add_u32 s35, s35, 3", "s_lshr_b32 s35, s35, 2")
    a("s_cmp_eq_u32 s35, 0", "s_cbranch_scc1 K2_rdone")
    a("s_sub_u32 s36, s35, 1", "s_and_b32 s39, s36, 3", "s_lshr_b32 s36, s36, 2")
    a("s_mul_i32 s40, s36, s41", "v_add_u32 v56, s40, v5", "v_mov_b32 v57, v5")
    def rd(ereg,va):
        a(f"ds_read2_b32 v[{ereg}:{ereg+1}], v{va} offset0:0 offset1:4", f"ds_read2_b32 v[{ereg+2}:{ereg+3}], v{va} offset0:8 offset1:12")
    a(f"v_add_u32 v56, {LIST}, v56", f"v_add_u32 v57, {LIST}, v57")
    rd(8,56); rd(12,57)
    a("v_add_u32 v57, s41, v57")
    def load1(b,t,ereg):
        a(f"v_add_u32 v{ereg+t}, v{ereg+t}, v6")
        if o.exp=="noload": return
        if o.exp=="oob": a(f"v_mov_b32 v{ereg+t}, 0x7fffff00")
        a(f"buffer_load_dwordx4 v[{b+8*t}:{b+8*t+3}], v{ereg+t}, s[12:15], 0 offen",
          f"buffer_load_dwordx4 v[{b+8*t+4}:{b+8*t+7}], v{ereg+t}, s[12:15], 0 offen offset:64")
    a("s_waitcnt lgkmcnt(2)")
    for t in range(4):
        load1(XB,t,8)
        if t<3: a(f"s_cmp_eq_u32 s39, {t}", "s_cbranch_scc1 K2_t0")
    a("K2_t0:")
    a("s_cmp_eq_u32 s36, 0", "s_cbranch_scc1 K2_last0")
    a("s_waitcnt lgkmcnt(0)")
    for t in range(4): load1(XB+32,t,12)
    def compute(b):
        if o.exp=="nocompute": return
        for z in range(4):
            for t in range(4):
                A=b+8*t+2*z; D=40+4*t
                a(f"v_mfma_f32_4x4x4_16b_bf16 v[{D}:{D+3}], v[{A}:{A+1}], v[{16+2*z}:{17+2*z}], "+("0" if z==0 else f"v[{D}:{D+3}]"))
        a("s_nop 1")
        for k in range(3):
            for t in range(4):
                j=[x for x in range(4) if x!=t][k]
                src1 = f"v{40+4*t+t}" if k==0 else f"v{60+t}" if False else (f"v{40+4*t+t}")
                a(f"v_add_f32_dpp v{40+4*t+t}, v{40+4*t+j}, v{40+4*t+t} quad_perm:[{j},{j},{j},{j}] row_mask:0xf bank_mask:0xf")
        a("v_cndmask_b32 v40, v40, v45, s[22:23]", "v_cndmask_b32 v50, v50, v55, s[22:23]", "v_cndmask_b32 v56, v40, v50, s[28:29]")
        a("v_mul_f32 v56, s30, v56", "v_exp_f32 v56, v56", "s_nop 0", "v_add_f32 v56, 1.0, v56", "v_rcp_f32 v56, v56", "s_nop 0",
          "v_cvt_pk_bf16_f32 v56, v56, v56", "s_nop 1")
        for t in range(4):
            a(f"v_and_b32_dpp v{40+2*t}, v56, v3 quad_perm:[{t},{t},{t},{t}] row_mask:0xf bank_mask:0xf",
              f"v_and_b32_dpp v{41+2*t}, v56, v4 quad_perm:[{t},{t},{t},{t}] row_mask:0xf bank_mask:0xf")
        for t in range(4):
            for z in range(4):
                A=b+8*t+2*z; D=24+4*z
                a(f"v_mfma_f32_4x4x4_16b_bf16 v[{D}:{D+3}], v[{A}:{A+1}], v[{40+2*t}:{41+2*t}], v[{D}:{D+3}]")
    for h in range(2):
        b=XB+32*h
        a(f"K2_loop{h}:")
        a("s_cmp_lt_u32 s36, 2", f"s_cbranch_scc1 K2_nord{h}")
        rd(8,57); a("v_add_u32 v57, s41, v57")
        a(f"K2_nord{h}:")
        a("s_waitcnt vmcnt(8)")
        compute(b)
        a("s_sub_u32 s36, s36, 1", "s_cmp_eq_u32 s36, 0", f"s_cbranch_scc1 K2_last{1-h}")
        a("s_waitcnt lgkmcnt(0)")
        for t in range(4): load1(b,t,8)
        if h==1: a("s_branch K2_loop0")
    for h in range(2):
        a(f"K2_last{h}:", "s_waitcnt vmcnt(0) lgkmcnt(0)")
        compute(XB+32*h)
        if h==0: a("s_branch K2_rdone")
    a("K2_rdone:")
    st.stamp(5)
    a("s_or_b32 s35, s34, s38", "s_cmp_lg_u32 s35, 0", "s_cbranch_scc1 K2_more")
    a("s_cmp_gt_u32 s16, 12", "s_cbranch_scc1 K2_epi")
    a(f"v_mul_u32_u24 v56, {RS}, v7", "v_and_b32 v57, 15, v0", "v_lshl_add_u32 v56, v57, 3, v56", "s_nop 1")
    for z in range(2):
        for j in range(4):
            r=24+4*z+j
            a(f"v_add_f32_dpp v{r}, v{r}, v{r} row_ror:8 row_mask:0xf bank_mask:0x3")
    for z in range(2):
        for j in range(4):
            r=24+4*z+j
            a(f"v_add_f32_dpp v{r}, v{r+8}, v{r+8} row_ror:8 row_mask:0xf bank_mask:0xc")
    for j in range(4): a(f"v_add_f32_dpp v{24+j}, v{24+j}, v{24+j} row_shl:4 row_mask:0xf bank_mask:0x5")
    for j in range(4): a(f"v_add_f32_dpp v{24+j}, v{28+j}, v{28+j} row_shr:4 row_mask:0xf bank_mask:0xa")
    a("v_cvt_pk_bf16_f32 v24, v24, v25", "v_cvt_pk_bf16_f32 v25, v26, v27", f"ds_write_b64 v56, v[24:25] offset:{AGG}")
    a("s_cmp_lt_u32 s16, 12", "s_cbranch_scc1 K2_wait_end")
    a("K2_epi:")
    a("v_and_b32 v8, 63, v0", "v_lshlrev_b32 v9, 4, v8", f"v_add_u32 v9, {WS_WV:#x}, v9", "v_add_u32 v8, 0x1000, v9")
    for f in range(8): a(f"global_load_dwordx4 v[{64+4*f}:{67+4*f}], v{9 if f<4 else 8}, s[8:9] offset:{1024*(f&3)}")
    a("v_and_b32 v10, 15, v0", "v_bfe_u32 v11, v0, 4, 2", "v_bfe_u32 v12, v0, 6, 2", "v_lshl_add_u32 v13, v12, 4, v10",
      f"v_mul_u32_u24 v13, {RS}, v13", "v_lshl_add_u32 v13, v11, 4, v13")
    a("v_lshl_add_u32 v14, v12, 2, v11", "v_lshlrev_b32 v14, 17, v14", "v_lshl_add_u32 v14, v10, 3, v14", "s_lshl_b32 s19, s17, 7", "v_add_u32 v14, s19, v14")
    for i in range(1,4): a(f"v_add_u32 v{14+i}, {32768*i:#x}, v14")
    srd(a,24,6,7,N*128)
    a("s_waitcnt vmcnt(0) lgkmcnt(0)", "s_barrier")
    st.stamp(6)
    for k in range(2): a(f"ds_read_b128 v[{40+4*k}:{43+4*k}], v13 offset:{AGG+64*k}")
    for k in range(2):
        a(f"s_waitcnt lgkmcnt({1-k})")
        for T in range(4):
            B=64+4*(2*T+k); D=96+4*T
            a(f"v_mfma_f32_16x16x32_bf16 v[{D}:{D+3}], v[{40+4*k}:{43+4*k}], v[{B}:{B+3}], "+("0" if k==0 else f"v[{D}:{D+3}]"))
    a("s_nop 7")
    a("s_cmp_lg_u32 s16, 15", "s_cbranch_scc1 K2_nosum")
    for T in range(4): a(f"v_add_f32 v{96+4*T}, v{96+4*T}, v{97+4*T}", f"v_add_f32 v{98+4*T}, v{98+4*T}, v{99+4*T}")
    for T in range(4): a(f"v_add_f32 v{96+4*T}, v{96+4*T}, v{98+4*T}")
    a("K2_nosum:")
    for i in range(4):
        a(f"v_cvt_pk_bf16_f32 v{24+2*i}, v{96+i}, v{100+i}", f"v_cvt_pk_bf16_f32 v{25+2*i}, v{104+i}, v{108+i}")
        a(f"buffer_store_dwordx2 v[{24+2*i}:{25+2*i}], v{14+i}, s[24:27], 0 offen")
    if o.stamps:
        a("s_waitcnt vmcnt(0)"); st.stamp(7)
        a("s_cmp_lg_u32 s16, 13", "s_cbranch_scc1 K2_end")
        st.n=8; st.store(8,44,nm)
    a("s_endpgm")
    a("K2_wait_end:", "s_waitcnt lgkmcnt(0)", "s_barrier")
    if o.stamps:
        a("s_cmp_lg_u32 s16, 0", "s_cbranch_scc1 K2_end")
        st2=Stamps(a,True,72,6+8,2); st2.base=72
        a("s_mov_b32 s63, 0")
        st2.store(8,44,nm)
    a("K2_end:", "s_endpgm")
    a("K2_ovf:")
    a("v_lshlrev_b32 v61, 4, v0", f"v_add_u32 v61, {SPILL}, v61")
    a("ds_write_b128 v61, v[40:43]", "ds_write_b128 v61, v[44:47] offset:16384", "ds_write_b128 v61, v[8:11] offset:32768", "ds_write_b128 v61, v[12:15] offset:49152")
    a("s_mov_b32 s42, 0", "s_mov_b32 s35, 0", "K2_mx:", "v_readlane_b32 s36, v56, s35", "s_max_u32 s42, s42, s36", "s_add_u32 s35, s35, 1", "s_cmp_lt_u32 s35, 49", "s_cbranch_scc1 K2_mx")
    a("s_mov_b32 s37, 0")
    a("K2_npass:")
    a("s_waitcnt lgkmcnt(0)", "s_barrier")
    a("v_lshlrev_b32 v56, 4, v0")
    for i in range(4): a(f"v_mov_b32 v{44+i}, {SENT:#x}")
    fill_list(56,44)
    a("s_waitcnt lgkmcnt(0)", "s_barrier")
    a(f"v_add_u32 v61, {SPILL}, v56")
    a("ds_read_b128 v[40:43], v61", "ds_read_b128 v[44:47], v61 offset:16384", "ds_read_b128 v[8:11], v61 offset:32768", "ds_read_b128 v[12:15], v61 offset:49152")
    a("v_lshrrev_b32 v57, 16, v2", "v_subrev_u32 v57, s33, v57", "v_sub_u32 v57, v57, v63", f"s_movk_i32 s35, {CAP}", f"s_movk_i32 s36, {LS//2}")
    a("s_waitcnt lgkmcnt(0)")
    for i in range(8):
        a(f"v_subrev_u32 v{8+i}, s37, v{8+i}", f"v_and_b32 v48, 127, v{40+i}", "v_mul_u32_u24 v48, s36, v48", f"v_lshl_add_u32 v48, v{8+i}, 2, v48")
        a(f"v_cmpx_lt_i32 vcc, {16*(i>>2)+(i&3)}, v57", f"v_cmpx_gt_u32 vcc, s35, v{8+i}", f"ds_write_b32 v48, v{40+i} offset:{LIST}", "s_mov_b64 exec, -1")
    for r in range(XB,XB+32): a(f"v_mov_b32 v{r}, 0")
    a("v_min_u32 v59, 48, v7", "v_lshlrev_b32 v59, 2, v59")
    a("s_waitcnt lgkmcnt(0)", "s_barrier")
    a("ds_read_b32 v59, v59", f"s_add_u32 s35, s37, {CAP}", "s_cmp_lt_u32 s35, s42", "s_cselect_b32 s38, 1, 0", "s_waitcnt lgkmcnt(0)", "s_branch K2_pass")
    a("K2_more:")
    a("s_cmp_eq_u32 s38, 0", "s_cbranch_scc1 K2_next", f"s_add_u32 s37, s37, {CAP}", "s_branch K2_npass")
    a("K2_next:")
    a("s_waitcnt lgkmcnt(0)", "s_barrier")
    a("v_lshlrev_b32 v56, 4, v0")
    for i in range(4): a(f"v_mov_b32 v{40+i}, 0", f"v_mov_b32 v{44+i}, {SENT:#x}")
    a("v_cmp_gt_u32 vcc, 256, v56", "s_and_saveexec_b64 s[20:21], vcc", "ds_write_b128 v56, v[40:43]", "s_mov_b64 exec, s[20:21]")
    fill_list(56,44)
    for r in range(XB,XB+32): a(f"v_mov_b32 v{r}, 0")
    a("s_add_u32 s33, s33, 32", "s_mov_b32 s37, 0", "s_branch K2_batch")
    return a.text()+kd(nm,128,96)

HDR="""; gather_scatter (FeatGraph-style SDDMM + SpMM) - two launches:
; @launch kernel=bin_kernel grid=(257,1,1) block=(832,1,1) lds=%d
; @launch kernel=gather_scatter__kernel_systems_refs_featgraph__graph_kernel grid=(256,1,1) block=(1024,1,1) lds=%d
.amdgcn_target "amdgcn-amd-amdhsa--gfx950"
.text
"""
if __name__=="__main__":
    ap=argparse.ArgumentParser()
    ap.add_argument("-o",default="k.s"); ap.add_argument("--stamps",action="store_true")
    ap.add_argument("--pf",type=int,default=1); ap.add_argument("--st1",default=""); ap.add_argument("--exp",default=""); ap.add_argument("--prio",type=int,default=0)
    o=ap.parse_args()
    if o.st1: o.st1=" "+o.st1
    txt=HDR%(K1_LDS,K2_LDS)+gen_k1(o)+gen_k2(o)
    open(o.o,"w").write(txt)
    build(o.o,o.o.replace(".s",".co"))
    print("built",o.o,"K1 lds",K1_LDS,"K2 lds",K2_LDS)
```

```python
import sys
from build import build
from gen import kd, head, WS_STAMP
def amp(src, out, mode, ia, ib, M=8):
    s=open(src).read()
    opa = "ds_min_u32" if mode in("maxmin",) else ("ds_max_u32" if mode=="minmax" else None)
    body=f'''{head("amp_kernel")}
    s_cmp_lg_u32 s2, 0
    s_cbranch_scc1 amp_end
    s_load_dwordx2 s[4:5], s[0:1], 56
    v_lshlrev_b32 v1, 7, v0
    v_add_u32 v1, {WS_STAMP:#x}, v1
    v_mov_b32 v4, 0
    v_mov_b32 v6, {"-1" if mode=="maxmin" else "0"}
    v_mov_b32 v7, {"-1" if mode=="minmax" else "0"}
    ds_write_b64 v4, v[6:7]
    s_waitcnt lgkmcnt(0)
    global_load_dword v2, v1, s[4:5] offset:{8*ia}
    {f"v_xor_b32 v1, {ib*128}, v1" if mode=="xor" else "s_nop 0"}
    global_load_dword v3, v1, s[4:5] offset:{8*(ia if mode=="xor" else ib)}
    s_barrier
    s_waitcnt vmcnt(0)
'''
    if mode=="maxmin": body+="    ds_min_u32 v4, v2\n    ds_max_u32 v4, v3 offset:4\n"
    elif mode=="minmax": body+="    ds_max_u32 v4, v2\n    ds_min_u32 v4, v3 offset:4\n"
    elif mode=="xor": body+="    v_cmp_eq_u32 vcc, v2, v3\n    v_mov_b32 v3, 0\n    s_nop 1\n    v_addc_co_u32 v3, vcc, 0, v3, vcc\n    ds_add_u32 v4, v3 offset:4\n"
    elif mode=="avg": body+="    v_sub_u32 v3, v3, v2\n    ds_add_u32 v4, v3 offset:4\n"
    body+=f'''    s_waitcnt lgkmcnt(0)
    s_barrier
    ds_read_b64 v[6:7], v4
    s_waitcnt lgkmcnt(0)
    v_sub_u32 v5, v7, v6
    s_nop 1
    v_readfirstlane_b32 s8, v5
    s_nop 3
    {"s_lshr_b32 s8, s8, 8" if mode=="avg" else "s_nop 0"}
    s_max_i32 s8, s8, 0
    s_min_u32 s8, s8, 5000
    s_mul_i32 s8, s8, {M}
    s_memrealtime s[10:11]
    s_waitcnt lgkmcnt(0)
amp_l:
    s_memrealtime s[12:13]
    s_waitcnt lgkmcnt(0)
    s_sub_u32 s9, s12, s10
    s_cmp_lt_u32 s9, s8
    s_cbranch_scc1 amp_l
amp_end:
    s_endpgm
'''+kd("amp_kernel",8,24)
    s=s.replace("; @launch grid=","; @launch kernel=gather_scatter__kernel_systems_refs_featgraph__graph_kernel grid=")
    lines=s.split("\n")
    i2=[i for i,l in enumerate(lines) if l.startswith("; @launch")][-1]
    lines.insert(i2+1,"; @launch kernel=amp_kernel grid=(1,1,1) block=(256,1,1) lds=64")
    open(out,"w").write("\n".join(lines)+body)
    build(out,out.replace(".s",".co"))
if __name__=="__main__":
    src=sys.argv[1]
    for spec in sys.argv[2:]:
        mode,ia,ib=spec.split(":")
        M=0 if mode=="zero" else 8
        amp(src, src.replace(".s",f"_a_{mode}_{ia}_{ib}.s"), "avg" if mode=="zero" else mode, int(ia), int(ib), M)
        print(src.replace(".s",f"_a_{mode}_{ia}_{ib}.s"))
```

```python
import sys, argparse
from build import build
from gen import Asm, kd, head, srd, scan64, Stamps, N, E, EPW, WS_STAMP, NSTAMP
SENT=0x7FFFFF80; MARK=0xFC
PIN=EPW*4
PSTR=15616
WS_T=0x400000
HIST=0; CNT=1024; MISC=1280; AGG=1296; RS=144; QL=AGG+64*RS; WQL=QL+64*RS; WVL=WQL+8192; LIST=WVL+8192; LS=528; CAP=128; LISTB=49*LS
SPILL=(LIST+LISTB+15)//16*16; STAGE=SPILL+65536; LDS=STAGE+PSTR
MAXPOLL=200000
def gen(o):
    a=Asm(); st=Stamps(a,o.stamps,64,0,14)
    nm="gather_scatter__kernel_systems_refs_featgraph__graph_kernel"
    XB=64
    def fill_list(vaddr,vd):
        a(f"ds_write_b128 v{vaddr}, v[{vd}:{vd+3}] offset:{LIST}")
        a(f"v_cmp_gt_u32 vcc, {LISTB-16384}, v{vaddr}", "s_and_saveexec_b64 s[20:21], vcc", f"ds_write_b128 v{vaddr}, v[{vd}:{vd+3}] offset:{LIST+16384}", "s_mov_b64 exec, s[20:21]")
    a(head(nm)); st.stamp(0)
    a("s_cmp_ge_u32 s2, 256", "s_cbranch_scc1 K_end")
    a("s_load_dwordx8 s[4:11], s[0:1], 0",
      "s_load_dwordx8 s[48:55], s[0:1], 32")
    a("s_memrealtime s[56:57]")
    a("v_lshrrev_b32 v1, 6, v0", "v_lshlrev_b32 v56, 4, v0", "v_readfirstlane_b32 s16, v1")
    a(f"s_mul_i32 s18, s2, {PIN}", "v_add_u32 v57, s18, v56", f"s_sub_u32 s18, {E*4}, s18", f"s_min_u32 s18, s18, {PIN}")
    a("s_and_b32 s17, s2, 7", "s_lshl_b32 s17, s17, 5", "s_lshr_b32 s19, s2, 3", "s_or_b32 s17, s17, s19")
    a("s_mul_i32 s19, s19, 50048", "v_lshlrev_b32 v58, 7, v0", "v_add_u32 v58, s19, v58",
      "v_cmp_gt_u32 vcc, 391, v0", "v_mov_b32 v59, 0x7ffffff0", "s_nop 0", "v_cndmask_b32 v58, v59, v58, vcc")
    a("v_and_b32 v59, 15, v0", "v_bfe_u32 v60, v0, 4, 2", "v_bfe_u32 v61, v0, 6, 2", "v_lshl_add_u32 v59, v61, 4, v59")
    a("v_lshlrev_b32 v61, 15, v59", "v_lshl_add_u32 v61, v60, 4, v61", "s_lshl_b32 s19, s17, 7", "v_add_u32 v61, s19, v61")
    a("s_lshl_b32 s19, s16, 10", f"s_add_u32 s19, s19, {WQL}", "s_mov_b32 m0, s19", "v_and_b32 v62, 0x1fff, v56", "v_mov_b32 v63, 0")
    a("v_cmp_gt_u32 s[44:45], s18, v56")
    a("s_mov_b64 exec, s[44:45]")
    a("s_waitcnt lgkmcnt(0)")
    a("s_cbranch_execz K_noload")
    a("global_load_dwordx4 v[8:11], v57, s[8:9]", "global_load_dwordx4 v[12:15], v57, s[6:7]")
    a("K_noload:", "s_mov_b64 exec, -1")
    st.stamp(1)
    a("s_or_b32 s19, s2, s16", "s_cmp_lg_u32 s19, 15", "s_cbranch_scc1 K_nononce", "s_cmp_lg_u32 s2, 0", "s_cbranch_scc1 K_nononce")
    a("s_or_b32 s56, s56, 1", "v_mov_b32 v40, s56", "v_mov_b32 v41, s57", "s_mov_b64 exec, 1", "global_store_dwordx2 v63, v[40:41], s[52:53] sc1", "s_mov_b64 exec, -1")
    a("K_nononce:")
    srd(a,12,4,5,N*128)
    a("s_cmp_ge_u32 s16, 8", "s_cselect_b32 s24, s48, s10", "s_cselect_b32 s25, s49, s11", "s_and_b32 s25, s25, 0xffff", "s_mov_b32 s26, 8192", "s_mov_b32 s27, 0x20000")
    a("buffer_load_dwordx4 v62, s[24:27], 0 offen lds")
    a("s_cmp_lt_u32 s16, 12", "s_cbranch_scc1 K_nox")
    a("buffer_load_dwordx4 v[96:99], v61, s[12:15], 0 offen", "buffer_load_dwordx4 v[100:103], v61, s[12:15], 0 offen offset:64")
    a("K_nox:")
    if o.pf==1: a("s_cmp_ge_u32 s16, 7", "s_cbranch_scc1 K_nopf", "buffer_load_dword v2, v58, s[12:15], 0 offen", "K_nopf:")
    for i in range(4): a(f"v_mov_b32 v{40+i}, 0", f"v_mov_b32 v{48+i}, {MARK:#x}")
    a(f"v_cmp_gt_u32 vcc, {MISC}, v56", "s_and_saveexec_b64 s[20:21], vcc", "ds_write_b128 v56, v[40:43]", "s_mov_b64 exec, s[20:21]")
    a(f"v_add_u32 v61, {STAGE}, v56", f"v_cmp_gt_u32 vcc, {PSTR}, v56", "s_and_saveexec_b64 s[20:21], vcc", "ds_write_b128 v61, v[48:51]", "s_mov_b64 exec, s[20:21]")
    a("v_lshrrev_b32 v53, 2, v0", f"s_mul_i32 s18, s2, {PSTR}", "v_add_u32 v57, s18, v56")
    a("v_mov_b32 v55, 1")
    a("s_waitcnt lgkmcnt(0)", "s_barrier")
    a("s_cmp_lg_u32 s16, 15", "s_cbranch_scc1 K_edges")
    a("s_mov_b32 s58, 0")
    a("K_np:", "global_load_dwordx2 v[40:41], v63, s[52:53] sc1", "s_add_u32 s58, s58, 1", f"s_cmp_gt_u32 s58, {MAXPOLL}", "s_cbranch_scc1 K_end",
      "s_waitcnt vmcnt(0)", "v_readfirstlane_b32 s56, v40", "s_cmp_eq_u32 s56, 0", "s_cbranch_scc1 K_np")
    a(f"ds_write_b64 v63, v[40:41] offset:{MISC}", "s_branch K_b2")
    a("K_edges:")
    a("s_cmp_ge_u32 s16, 13", "s_cbranch_scc1 K_wb2")
    a("s_mov_b64 exec, s[44:45]")
    tail=[2 if o.pf==1 else 1, 1, 3]
    a("s_cmp_lt_u32 s16, 7", "s_cbranch_scc1 K_wa", "s_cmp_lt_u32 s16, 12", "s_cbranch_scc1 K_wb", f"s_waitcnt vmcnt({tail[2]+1})", "s_branch K_wd",
      "K_wb:", f"s_waitcnt vmcnt({tail[1]+1})", "s_branch K_wd", "K_wa:", f"s_waitcnt vmcnt({tail[0]+1})", "K_wd:")
    st.stamp(2)
    for e in range(4):
        a(f"v_lshlrev_b32_sdwa v{16+e}, 2, v{8+e} dst_sel:DWORD dst_unused:UNUSED_PAD src0_sel:DWORD src1_sel:BYTE_0")
        a(f"ds_add_rtn_u32 v{20+e}, v{16+e}, v55 offset:{HIST}")
    for e in range(4):
        a(f"v_lshlrev_b32_sdwa v{8+e}, 2, v{8+e} dst_sel:DWORD dst_unused:UNUSED_PAD src0_sel:DWORD src1_sel:BYTE_1")
    a("s_cmp_lt_u32 s16, 7", "s_cbranch_scc1 K_wa2", "K_wb2:", "s_waitcnt vmcnt(0)", "K_wa2:", f"s_waitcnt vmcnt({1 if o.pf==1 else 0})")
    for e in range(4): a(f"v_lshl_or_b32 v{12+e}, v{12+e}, 8, v{8+e}")
    a("s_mov_b64 exec, -1")
    if o.pf==2: a("s_cmp_ge_u32 s16, 7", "s_cbranch_scc1 K_b2", "buffer_load_dword v2, v58, s[12:15], 0 offen")
    a("K_b2:")
    a("s_waitcnt lgkmcnt(0)", "s_barrier")
    st.stamp(3)
    a(f"ds_read_b64 v[8:9], v63 offset:{MISC}")
    a("s_cmp_lg_u32 s16, 0", "s_cbranch_scc1 K_noscan")
    a(f"ds_read_b128 v[40:43], v56 offset:{HIST}", "s_lshl_b32 s19, s2, 11", f"s_add_u32 s19, s19, {WS_T:#x}", "v_lshl_add_u32 v58, v56, 1, s19", "s_waitcnt lgkmcnt(0)")
    a("v_readfirstlane_b32 s56, v8", "v_readfirstlane_b32 s57, v9")
    for i in range(4): a(f"v_add_u32 v{40+i}, 3, v{40+i}", f"v_lshrrev_b32 v{40+i}, 2, v{40+i}")
    a("v_add_u32 v45, v40, v41", "v_add_u32 v46, v45, v42", "v_add_u32 v47, v46, v43", "v_mov_b32 v44, v47")
    scan64(a,44)
    a("s_lshl_b32 s59, s57, 20", "v_mov_b32 v10, v44")
    a("v_sub_u32 v44, v44, v47", "v_add_u32 v47, v44, v46", "v_add_u32 v46, v44, v45", "v_add_u32 v45, v44, v40")
    for i in range(4): a(f"v_lshlrev_b32 v{48+i}, 4, v{44+i}")
    a(f"ds_write_b128 v56, v[48:51] offset:{HIST}")
    a("s_mov_b64 exec, 0x8000000000000000" if False else "s_mov_b32 exec_lo, 0\ns_mov_b32 exec_hi, 0x80000000", f"ds_write_b32 v63, v10 offset:{MISC+8}", "s_mov_b64 exec, -1")
    for i in range(4): a(f"v_lshl_or_b32 v{40+i}, v{40+i}, 10, v{44+i}")
    a("v_or_b32 v44, s59, v40", "v_mov_b32 v45, s56", "v_or_b32 v46, s59, v41", "v_mov_b32 v47, s56",
      "v_or_b32 v48, s59, v42", "v_mov_b32 v49, s56", "v_or_b32 v50, s59, v43", "v_mov_b32 v51, s56")
    a("global_store_dwordx4 v58, v[44:47], s[54:55] sc1", "global_store_dwordx4 v58, v[48:51], s[54:55] offset:16 sc1")
    a("K_noscan:", "s_waitcnt lgkmcnt(0)", "s_barrier")
    a("v_readfirstlane_b32 s56, v8", "v_readfirstlane_b32 s57, v9")
    a(f"ds_read_b32 v10, v63 offset:{MISC+8}")
    a("s_mov_b64 exec, s[44:45]")
    for e in range(4): a(f"ds_read_b32 v{16+e}, v{16+e} offset:{HIST}")
    a("s_lshl_b32 s59, s57, 20", "s_lshl_b32 s92, s56, 22", "s_lshr_b32 s93, s56, 10", "s_lshl_b32 s93, s93, 22", "s_lshr_b32 s94, s56, 20", "s_lshl_b32 s94, s94, 22",
      "s_lshr_b64 s[96:97], s[56:57], 30", "s_lshl_b32 s95, s96, 22")
    a(f"s_mov_b32 s58, {STAGE}")
    for e in range(4):
        a("s_waitcnt lgkmcnt(3)")
        a(f"v_lshl_add_u32 v{16+e}, v{20+e}, 2, v{16+e}", f"v_add_u32 v{16+e}, s58, v{16+e}", f"ds_write_b32 v{16+e}, v{12+e}")
    a("s_mov_b64 exec, -1")
    a("v_lshlrev_b32 v10, 4, v10")
    a("s_lshl_b32 s18, s17, 3", f"s_add_u32 s18, s18, {WS_T:#x}", "v_lshl_add_u32 v58, v53, 11, s18")
    a("s_waitcnt lgkmcnt(0)", "s_barrier")
    st.stamp(4)
    a("ds_read_b128 v[40:43], v61")
    a("global_load_dwordx2 v[8:9], v58, s[54:55] sc1")
    a("v_cmp_gt_u32 vcc, v10, v56", "s_and_saveexec_b64 s[20:21], vcc", "s_mov_b32 s58, 0", "s_cbranch_execz K_nost")
    a("s_mov_b32 s58, 1", "s_waitcnt lgkmcnt(0)")
    for i in range(4): a(f"v_or_b32 v{40+i}, s{92+i}, v{40+i}")
    a("global_store_dwordx4 v57, v[40:43], s[54:55] sc1")
    a("K_nost:", "s_mov_b64 exec, -1")
    st.stamp(5)
    a("s_nop 0")
    for i in range(4): a(f"v_mov_b32 v{44+i}, {SENT:#x}")
    fill_list(56,44)
    a("v_and_b32 v52, 3, v0", "v_lshlrev_b32 v1, 4, v52")
    a("s_mov_b32 s22, 0xaaaaaaaa", "s_mov_b32 s23, 0xaaaaaaaa", "s_mov_b32 s28, 0xcccccccc", "s_mov_b32 s29, 0xcccccccc")
    a("v_mov_b32 v3, 0xffff", "v_mov_b32 v4, 0xffff0000", "v_cndmask_b32 v4, v3, v4, s[22:23]",
      "v_cndmask_b32 v3, v4, v63, s[28:29]", "v_cndmask_b32 v4, v63, v4, s[28:29]")
    a("s_mov_b32 s30, 0xbe38aa3b", f"s_mov_b32 s31, {PSTR}", "v_mul_u32_u24 v62, s31, v53", "v_add_u32 v62, v62, v1")
    a("s_mov_b32 s33, 0", "s_mov_b32 s37, 0", f"s_mov_b32 s31, {LS//4}", f"s_movk_i32 s43, {MARK}")
    a("v_lshrrev_b32 v7, 4, v0", "v_min_u32 v6, 48, v7")
    a(f"v_mul_u32_u24 v5, {LS}, v6", "v_bfe_u32 v54, v0, 2, 2", "v_lshl_add_u32 v5, v54, 2, v5")
    a("v_sub_u32 v54, v7, v6", "v_lshl_add_u32 v5, v54, 6, v5")
    a("v_lshlrev_b32 v6, 1, v6", "v_sub_u32 v6, v1, v6")
    for r in range(24,40): a(f"v_mov_b32 v{r}, 0")
    for r in range(XB,XB+32): a(f"v_mov_b32 v{r}, 0")
    a("s_waitcnt lgkmcnt(0)", "s_barrier")
    a("s_cmp_lt_u32 s16, 12", "s_cbranch_scc1 K_noq")
    a("v_bfe_u32 v16, v0, 2, 2", "v_lshl_add_u32 v16, v60, 3, v16", "v_lshlrev_b32 v16, 7, v16", "v_lshl_add_u32 v16, v1, 1, v16")
    for k in range(2):
        for T in range(4):
            for hh in range(2):
                r=64+T*8+k*4+hh*2
                a(f"ds_read_b64_tr_b16 v[{r}:{r+1}], v16 offset:{WQL+k*4096+hh*512+8*T}")
    a(f"v_mul_u32_u24 v17, {RS}, v59", "v_lshl_add_u32 v17, v60, 5, v17")
    for k in range(2):
        a(f"s_waitcnt lgkmcnt({8-8*k})")
        for T in range(4):
            d=104+T*4; A=64+T*8+k*4; B=96+k*4
            a(f"v_mfma_f32_16x16x32_bf16 v[{d}:{d+3}], v[{A}:{A+3}], v[{B}:{B+3}], "+("0" if k==0 else f"v[{d}:{d+3}]"))
    for r in range(XB,XB+32): a(f"v_mov_b32 v{r}, 0")
    for T in range(4):
        d=104+T*4; r=96+2*T
        a(f"v_cvt_pk_bf16_f32 v{r}, v{d}, v{d+1}", f"v_cvt_pk_bf16_f32 v{r+1}, v{d+2}, v{d+3}")
    a(f"ds_write_b128 v17, v[96:99] offset:{QL}", f"ds_write_b128 v17, v[100:103] offset:{QL+16}")
    a("K_noq:")
    a("s_cmp_eq_u32 s58, 0", "s_cbranch_scc1 K_tp", "s_waitcnt vmcnt(1)", "s_branch K_tp1")
    a("K_tp:", "s_waitcnt vmcnt(0)", "K_tp1:")
    a("v_xor_b32 v2, s59, v8", "v_xor_b32 v9, s56, v9", "v_lshrrev_b32 v8, 20, v2", "v_or_b32 v9, v9, v8", "v_cmpx_ne_u32 vcc, 0, v9", "s_cbranch_execz K_tok")
    if o.sleep: a(f"s_sleep {o.sleep}")
    a("global_load_dwordx2 v[8:9], v58, s[54:55] sc1", "s_add_u32 s58, s58, 1", f"s_cmp_lt_u32 s58, {MAXPOLL}", "s_cbranch_scc1 K_tp", "s_endpgm")
    a("K_tok:", "s_mov_b64 exec, -1")
    st.stamp(6)
    a("K_batch:")
    a("v_and_b32 v56, 0x3ff, v2", "v_lshrrev_b32 v57, 10, v2", "v_add_u32 v56, s33, v56", "v_lshl_add_u32 v56, v56, 4, v62")
    a("v_subrev_u32 v57, s33, v57", "v_cmp_lt_i32 s[40:41], 8, v57", "v_sub_u32 v57, v57, v52")
    a("v_cmp_lt_i32 s[44:45], 0, v57", "v_cmp_lt_i32 s[46:47], 4, v57")
    for r in range(40,48): a(f"v_mov_b32 v{r}, s43")
    a("v_mov_b32 v58, 1")
    a("s_mov_b32 s58, 0")
    a("K_ep:")
    a("s_mov_b64 exec, s[44:45]", "s_cbranch_execz K_e1", "global_load_dwordx4 v[40:43], v56, s[54:55] sc1", "K_e1:")
    a("s_mov_b64 exec, s[46:47]", "s_cbranch_execz K_e2", "global_load_dwordx4 v[44:47], v56, s[54:55] offset:64 sc1", "K_e2:")
    a("s_mov_b32 s18, 0x400000", "s_waitcnt vmcnt(0)")
    for s in range(2):
        b=40+4*s
        a(f"s_mov_b64 exec, s[{44+2*s}:{45+2*s}]")
        for i in range(4): a(f"v_xor_b32 v{b+i}, s{92+i}, v{b+i}")
        a(f"v_or3_b32 v48, v{b}, v{b+1}, v{b+2}", f"v_or_b32 v48, v48, v{b+3}", f"v_cmp_le_u32 s[{44+2*s}:{45+2*s}], s18, v48")
    a("s_mov_b64 exec, -1", "s_or_b64 s[20:21], s[44:45], s[46:47]", "s_cbranch_scc0 K_eok")
    if o.sleep: a(f"s_sleep {o.sleep}")
    a("s_add_u32 s58, s58, 1", f"s_cmp_lt_u32 s58, {MAXPOLL}", "s_cbranch_scc1 K_ep", "s_endpgm")
    a("K_eok:")
    st.stamp(7)
    a("s_cmp_eq_u64 s[40:41], 0", "s_cbranch_scc1 K_noflag", "v_mov_b32 v16, 0x40000000", f"ds_or_b32 v63, v16 offset:{CNT+252}", "K_noflag:")
    for s in range(2):
        for e in range(4):
            r=40+4*s+e
            a(f"v_and_b32 v{r+8}, 0xff, v{r}")
        for e in range(4):
            r=40+4*s+e
            a(f"v_cmpx_ne_u32 vcc, s43, v{r+8}")
            if s==1: a(f"s_cbranch_execz K_at_done")
            a(f"ds_add_rtn_u32 v{8+4*s+e}, v{r+8}, v58 offset:{CNT}")
        if s==1: a("K_at_done:")
        a("s_mov_b64 exec, -1")
    for r in range(40,48): a(f"v_lshrrev_b32 v{r}, 1, v{r}", f"v_mul_u32_u24 v{r+8}, s31, v{r+8}")
    a(f"s_mov_b32 s18, {MARK*(LS//4)}")
    a("s_waitcnt lgkmcnt(0)")
    for s in range(2):
        for e in range(4):
            r=40+4*s+e
            a(f"v_cmpx_ne_u32 vcc, s18, v{r+8}")
            if s==1: a(f"s_cbranch_execz K_sc_done")
            a(f"v_lshl_add_u32 v{r+8}, v{8+4*s+e}, 2, v{r+8}", f"ds_write_b32 v{r+8}, v{r} offset:{LIST}")
        if s==1: a(f"K_sc_done:")
        a("s_mov_b64 exec, -1")
    a("v_and_b32 v56, 63, v0", "v_lshlrev_b32 v56, 2, v56", "v_min_u32 v59, 48, v7", f"v_mul_u32_u24 v60, {RS}, v59", "v_add_u32 v60, v60, v1", "v_lshlrev_b32 v59, 2, v59")
    a("s_waitcnt lgkmcnt(0)", "s_barrier")
    st.stamp(8)
    a(f"ds_read_b32 v56, v56 offset:{CNT}", f"ds_read_b32 v59, v59 offset:{CNT}")
    a(f"ds_read_b128 v[16:19], v60 offset:{QL}", f"ds_read_b128 v[20:23], v60 offset:{QL+64}")
    a("s_waitcnt lgkmcnt(3)")
    a("v_readlane_b32 s34, v56, 63", "v_and_b32 v56, 0xffff, v56", f"s_movk_i32 s35, {CAP}", "v_cmp_lt_u32 vcc, s35, v56")
    a("s_cbranch_vccnz K_ovf")
    a("s_mov_b32 s38, 0")
    a("K_pass:")
    a("s_cmp_gt_u32 s16, 12", "s_cbranch_scc1 K_rdone")
    a("s_waitcnt lgkmcnt(2)")
    a("v_readlane_b32 s35, v59, 0", "v_readlane_b32 s36, v59, 16", "v_readlane_b32 s39, v59, 32", "v_readlane_b32 s40, v59, 48")
    a("s_max_u32 s35, s35, s36", "s_max_u32 s39, s39, s40", "s_max_u32 s35, s35, s39")
    a("s_sub_i32 s35, s35, s37", "s_max_i32 s35, s35, 0", f"s_min_u32 s35, s35, {CAP}")
    a("s_movk_i32 s41, 64")
    a("s_cmp_lg_u32 s16, 12", "s_cbranch_scc1 K_norm")
    a("s_and_b32 s36, s35, 63", "s_min_u32 s36, s36, 16", "s_lshr_b32 s35, s35, 6", "s_lshl_b32 s35, s35, 4", "s_add_u32 s35, s35, s36", "s_movk_i32 s41, 256")
    a("K_norm:")
    a("s_add_u32 s35, s35, 3", "s_lshr_b32 s35, s35, 2")
    a("s_cmp_eq_u32 s35, 0", "s_cbranch_scc1 K_rdone")
    a("s_sub_u32 s36, s35, 1", "s_and_b32 s39, s36, 3", "s_lshr_b32 s36, s36, 2")
    a("s_mul_i32 s40, s36, s41", "v_add_u32 v56, s40, v5", "v_mov_b32 v57, v5")
    def rd(ereg,va):
        a(f"ds_read2_b32 v[{ereg}:{ereg+1}], v{va} offset0:0 offset1:4", f"ds_read2_b32 v[{ereg+2}:{ereg+3}], v{va} offset0:8 offset1:12")
    a(f"v_add_u32 v56, {LIST}, v56", f"v_add_u32 v57, {LIST}, v57")
    rd(8,56); rd(12,57)
    a("v_add_u32 v57, s41, v57")
    def load1(b,t,ereg):
        a(f"v_add_u32 v{ereg+t}, v{ereg+t}, v6")
        a(f"buffer_load_dwordx4 v[{b+8*t}:{b+8*t+3}], v{ereg+t}, s[12:15], 0 offen",
          f"buffer_load_dwordx4 v[{b+8*t+4}:{b+8*t+7}], v{ereg+t}, s[12:15], 0 offen offset:64")
    a("s_waitcnt lgkmcnt(2)")
    for t in range(4):
        load1(XB,t,8)
        if t<3: a(f"s_cmp_eq_u32 s39, {t}", "s_cbranch_scc1 K_t0")
    a("K_t0:")
    a("s_cmp_eq_u32 s36, 0", "s_cbranch_scc1 K_last0")
    a("s_waitcnt lgkmcnt(0)")
    for t in range(4): load1(XB+32,t,12)
    def compute(b):
        for z in range(4):
            for t in range(4):
                A=b+8*t+2*z; D=40+4*t
                a(f"v_mfma_f32_4x4x4_16b_bf16 v[{D}:{D+3}], v[{A}:{A+1}], v[{16+2*z}:{17+2*z}], "+("0" if z==0 else f"v[{D}:{D+3}]"))
        a("s_nop 1")
        for k in range(3):
            for t in range(4):
                j=[x for x in range(4) if x!=t][k]
                a(f"v_add_f32_dpp v{40+4*t+t}, v{40+4*t+j}, v{40+4*t+t} quad_perm:[{j},{j},{j},{j}] row_mask:0xf bank_mask:0xf")
        a("v_cndmask_b32 v40, v40, v45, s[22:23]", "v_cndmask_b32 v50, v50, v55, s[22:23]", "v_cndmask_b32 v56, v40, v50, s[28:29]")
        a("v_mul_f32 v56, s30, v56", "v_exp_f32 v56, v56", "s_nop 0", "v_add_f32 v56, 1.0, v56", "v_rcp_f32 v56, v56", "s_nop 0",
          "v_cvt_pk_bf16_f32 v56, v56, v56", "s_nop 1")
        for t in range(4):
            a(f"v_and_b32_dpp v{40+2*t}, v56, v3 quad_perm:[{t},{t},{t},{t}] row_mask:0xf bank_mask:0xf",
              f"v_and_b32_dpp v{41+2*t}, v56, v4 quad_perm:[{t},{t},{t},{t}] row_mask:0xf bank_mask:0xf")
        for t in range(4):
            for z in range(4):
                A=b+8*t+2*z; D=24+4*z
                a(f"v_mfma_f32_4x4x4_16b_bf16 v[{D}:{D+3}], v[{A}:{A+1}], v[{40+2*t}:{41+2*t}], v[{D}:{D+3}]")
    for h in range(2):
        b=XB+32*h
        a(f"K_loop{h}:")
        a("s_cmp_lt_u32 s36, 2", f"s_cbranch_scc1 K_nord{h}")
        rd(8,57); a("v_add_u32 v57, s41, v57")
        a(f"K_nord{h}:")
        a("s_waitcnt vmcnt(8)")
        compute(b)
        a("s_sub_u32 s36, s36, 1", "s_cmp_eq_u32 s36, 0", f"s_cbranch_scc1 K_last{1-h}")
        a("s_waitcnt lgkmcnt(0)")
        for t in range(4): load1(b,t,8)
        if h==1: a("s_branch K_loop0")
    for h in range(2):
        a(f"K_last{h}:", "s_waitcnt vmcnt(0) lgkmcnt(0)")
        compute(XB+32*h)
        if h==0: a("s_branch K_rdone")
    a("K_rdone:")
    st.stamp(9)
    a("s_or_b32 s35, s34, s38", "s_cmp_lg_u32 s35, 0", "s_cbranch_scc1 K_more")
    a("s_cmp_gt_u32 s16, 12", "s_cbranch_scc1 K_epi")
    a(f"v_mul_u32_u24 v56, {RS}, v7", "v_and_b32 v57, 15, v0", "v_lshl_add_u32 v56, v57, 3, v56", "s_nop 1")
    for z in range(2):
        for j in range(4):
            r=24+4*z+j
            a(f"v_add_f32_dpp v{r}, v{r}, v{r} row_ror:8 row_mask:0xf bank_mask:0x3")
    for z in range(2):
        for j in range(4):
            r=24+4*z+j
            a(f"v_add_f32_dpp v{r}, v{r+8}, v{r+8} row_ror:8 row_mask:0xf bank_mask:0xc")
    for j in range(4): a(f"v_add_f32_dpp v{24+j}, v{24+j}, v{24+j} row_shl:4 row_mask:0xf bank_mask:0x5")
    for j in range(4): a(f"v_add_f32_dpp v{24+j}, v{28+j}, v{28+j} row_shr:4 row_mask:0xf bank_mask:0xa")
    a("v_cvt_pk_bf16_f32 v24, v24, v25", "v_cvt_pk_bf16_f32 v25, v26, v27", f"ds_write_b64 v56, v[24:25] offset:{AGG}")
    a("s_cmp_lt_u32 s16, 12", "s_cbranch_scc1 K_wait_end")
    a("K_epi:")
    a("v_and_b32 v10, 15, v0", "v_bfe_u32 v11, v0, 4, 2", "v_lshlrev_b32 v9, 8, v11", "v_lshl_add_u32 v9, v10, 3, v9")
    for half in range(2):
        for f in range(4*half,4*half+4):
            T=f>>1; k=f&1
            for e in range(8):
                a(f"ds_read_u16 v{96+8*(f&3)+e}, v9 offset:{WVL+4096*k+2*T+(8*(e&3)+(e>>2))*128}")
        a("s_waitcnt lgkmcnt(0)")
        for f in range(4*half,4*half+4):
            for i in range(4): a(f"v_lshl_or_b32 v{64+4*f+i}, v{97+8*(f&3)+2*i}, 16, v{96+8*(f&3)+2*i}")
    a("v_bfe_u32 v12, v0, 6, 2", "v_lshl_add_u32 v13, v12, 4, v10", f"v_mul_u32_u24 v13, {RS}, v13", "v_lshl_add_u32 v13, v11, 4, v13")
    a("v_lshl_add_u32 v14, v12, 2, v11", "v_lshlrev_b32 v14, 17, v14", "v_lshl_add_u32 v14, v10, 3, v14", "s_lshl_b32 s19, s17, 7", "v_add_u32 v14, s19, v14")
    for i in range(1,4): a(f"v_add_u32 v{14+i}, {32768*i:#x}, v14")
    srd(a,24,50,51,N*128)
    a("s_waitcnt lgkmcnt(0)", "s_barrier")
    st.stamp(10)
    for k in range(2): a(f"ds_read_b128 v[{40+4*k}:{43+4*k}], v13 offset:{AGG+64*k}")
    for k in range(2):
        a(f"s_waitcnt lgkmcnt({1-k})")
        for T in range(4):
            B=64+4*(2*T+k); D=96+4*T
            a(f"v_mfma_f32_16x16x32_bf16 v[{D}:{D+3}], v[{40+4*k}:{43+4*k}], v[{B}:{B+3}], "+("0" if k==0 else f"v[{D}:{D+3}]"))
    a("s_nop 7")
    a("s_cmp_lg_u32 s16, 15", "s_cbranch_scc1 K_nosum")
    for T in range(4): a(f"v_add_f32 v{96+4*T}, v{96+4*T}, v{97+4*T}", f"v_add_f32 v{98+4*T}, v{98+4*T}, v{99+4*T}")
    for T in range(4): a(f"v_add_f32 v{96+4*T}, v{96+4*T}, v{98+4*T}")
    a("K_nosum:")
    for i in range(4):
        a(f"v_cvt_pk_bf16_f32 v{24+2*i}, v{96+i}, v{100+i}", f"v_cvt_pk_bf16_f32 v{25+2*i}, v{104+i}, v{108+i}")
        a(f"buffer_store_dwordx2 v[{24+2*i}:{25+2*i}], v{14+i}, s[24:27], 0 offen")
    if o.stamps:
        a("s_waitcnt vmcnt(0)"); st.stamp(11)
        a("s_cmp_lg_u32 s16, 13", "s_cbranch_scc1 K_end")
        st3=Stamps(a,True,84,10,2); st3.store(54,44,nm)
    a("s_endpgm")
    a("K_wait_end:", "s_waitcnt lgkmcnt(0)", "s_barrier")
    if o.stamps:
        a(f"s_cmp_lg_u32 s16, {o.sw}", "s_cbranch_scc1 K_end")
        st.n=10; st.store(54,44,nm)
    a("K_end:", "s_endpgm")
    a("K_ovf:")
    a("v_lshlrev_b32 v61, 4, v0", f"v_add_u32 v61, {SPILL}, v61")
    a("ds_write_b128 v61, v[40:43]", "ds_write_b128 v61, v[44:47] offset:16384", "ds_write_b128 v61, v[8:11] offset:32768", "ds_write_b128 v61, v[12:15] offset:49152")
    a("s_mov_b32 s42, 0", "s_mov_b32 s35, 0", "K_mx:", "v_readlane_b32 s36, v56, s35", "s_max_u32 s42, s42, s36", "s_add_u32 s35, s35, 1", "s_cmp_lt_u32 s35, 49", "s_cbranch_scc1 K_mx")
    a("s_mov_b32 s37, 0")
    a("K_npass:")
    a("s_waitcnt lgkmcnt(0)", "s_barrier")
    a("v_lshlrev_b32 v56, 4, v0")
    for i in range(4): a(f"v_mov_b32 v{44+i}, {SENT:#x}")
    fill_list(56,44)
    a("s_waitcnt lgkmcnt(0)", "s_barrier")
    a(f"v_add_u32 v61, {SPILL}, v56")
    a("ds_read_b128 v[40:43], v61", "ds_read_b128 v[44:47], v61 offset:16384", "ds_read_b128 v[8:11], v61 offset:32768", "ds_read_b128 v[12:15], v61 offset:49152")
    a(f"s_movk_i32 s35, {CAP}", f"s_movk_i32 s36, {LS//2}", f"s_movk_i32 s39, {MARK>>1}")
    a("s_waitcnt lgkmcnt(0)")
    for i in range(8):
        a(f"v_subrev_u32 v{8+i}, s37, v{8+i}", f"v_and_b32 v49, 127, v{40+i}", "v_mul_u32_u24 v48, s36, v49", f"v_lshl_add_u32 v48, v{8+i}, 2, v48")
        a(f"v_cmpx_ne_u32 vcc, s39, v49", f"v_cmpx_gt_u32 vcc, s35, v{8+i}", f"ds_write_b32 v48, v{40+i} offset:{LIST}", "s_mov_b64 exec, -1")
    for r in range(XB,XB+32): a(f"v_mov_b32 v{r}, 0")
    a("v_min_u32 v59, 48, v7", "v_lshlrev_b32 v59, 2, v59")
    a("s_waitcnt lgkmcnt(0)", "s_barrier")
    a(f"ds_read_b32 v59, v59 offset:{CNT}", f"s_add_u32 s35, s37, {CAP}", "s_cmp_lt_u32 s35, s42", "s_cselect_b32 s38, 1, 0", "s_waitcnt lgkmcnt(0)", "s_branch K_pass")
    a("K_more:")
    a("s_cmp_eq_u32 s38, 0", "s_cbranch_scc1 K_next", f"s_add_u32 s37, s37, {CAP}", "s_branch K_npass")
    a("K_next:")
    a("s_waitcnt lgkmcnt(0)", "s_barrier")
    a("v_lshlrev_b32 v56, 4, v0")
    for i in range(4): a(f"v_mov_b32 v{40+i}, 0", f"v_mov_b32 v{44+i}, {SENT:#x}")
    a("v_cmp_gt_u32 vcc, 256, v56", "s_and_saveexec_b64 s[20:21], vcc", f"ds_write_b128 v56, v[40:43] offset:{CNT}", "s_mov_b64 exec, s[20:21]")
    fill_list(56,44)
    for r in range(XB,XB+32): a(f"v_mov_b32 v{r}, 0")
    a("v_and_b32 v52, 3, v0")
    a("s_add_u32 s33, s33, 8", "s_mov_b32 s37, 0", "s_waitcnt lgkmcnt(0)", "s_barrier", "s_branch K_batch")
    return a.text()+kd(nm,128,100)

HDR="""; gather_scatter (FeatGraph-style SDDMM + SpMM), one launch of 256 co-resident workgroups (one per CU):
; @launch grid=(256,1,1) block=(1024,1,1) lds=%d
.amdgcn_target "amdgcn-amd-amdhsa--gfx950"
.text
"""
if __name__=="__main__":
    ap=argparse.ArgumentParser()
    ap.add_argument("-o",default="k3.s"); ap.add_argument("--stamps",action="store_true")
    ap.add_argument("--pf",type=int,default=1); ap.add_argument("--sleep",type=int,default=2); ap.add_argument("--sw",type=int,default=0)
    o=ap.parse_args()
    txt=HDR%LDS+gen(o)
    open(o.o,"w").write(txt)
    build(o.o,o.o.replace(".s",".co"))
    print("built",o.o,"lds",LDS)
```

```python
import sys, argparse
from build import build
from gen import Asm, kd, head, srd, scan64, Stamps, N, E, EPW, WS_STAMP, NSTAMP
SENT=0x7FFFFF80; MARK=0xFC
PIN=EPW*4
PSTR=15616
WS_T=0x400000
HIST=0; CNT=1024; MISC=1280; AGG=1296; RS=144; QL=AGG+64*RS; WQL=QL+64*RS; WVL=WQL+8192; LIST=WVL+8192; LS=528; CAP=128; LISTB=49*LS
SPILL=(LIST+LISTB+15)//16*16; STAGE=SPILL+65536; LDS=STAGE+PSTR
MAXPOLL=200000
def gen(o):
    a=Asm(); st=Stamps(a,o.stamps,64,0,14)
    nm="gather_scatter__kernel_systems_refs_featgraph__graph_kernel"
    XB=64
    def fill_list(vaddr,vd):
        a(f"ds_write_b128 v{vaddr}, v[{vd}:{vd+3}] offset:{LIST}")
        a(f"v_cmp_gt_u32 vcc, {LISTB-16384}, v{vaddr}", "s_and_saveexec_b64 s[20:21], vcc", f"ds_write_b128 v{vaddr}, v[{vd}:{vd+3}] offset:{LIST+16384}", "s_mov_b64 exec, s[20:21]")
    a(head(nm)); st.stamp(0)
    a("s_cmp_ge_u32 s2, 256", "s_cbranch_scc1 K_end")
    a("s_load_dwordx8 s[4:11], s[0:1], 0",
      "s_load_dwordx8 s[48:55], s[0:1], 32")
    a("s_memrealtime s[56:57]")
    a("v_lshrrev_b32 v1, 6, v0", "v_lshlrev_b32 v56, 4, v0", "v_readfirstlane_b32 s16, v1")
    a(f"s_mul_i32 s18, s2, {PIN}", "v_add_u32 v57, s18, v56", f"s_sub_u32 s18, {E*4}, s18", f"s_min_u32 s18, s18, {PIN}")
    a("s_and_b32 s17, s2, 7", "s_lshl_b32 s17, s17, 5", "s_lshr_b32 s19, s2, 3", "s_or_b32 s17, s17, s19")
    a("s_mul_i32 s19, s19, 50048", "v_lshlrev_b32 v58, 7, v0", "v_add_u32 v58, s19, v58",
      "v_cmp_gt_u32 vcc, 391, v0", "v_mov_b32 v59, 0x7ffffff0", "s_nop 0", "v_cndmask_b32 v58, v59, v58, vcc")
    a("v_and_b32 v59, 15, v0", "v_bfe_u32 v60, v0, 4, 2", "v_bfe_u32 v61, v0, 6, 2", "v_lshl_add_u32 v59, v61, 4, v59")
    a("v_lshlrev_b32 v61, 15, v59", "v_lshl_add_u32 v61, v60, 4, v61", "s_lshl_b32 s19, s17, 7", "v_add_u32 v61, s19, v61")
    a("s_lshl_b32 s19, s16, 10", f"s_add_u32 s19, s19, {WQL}", "s_mov_b32 m0, s19", "v_and_b32 v62, 0x1fff, v56", "v_mov_b32 v63, 0")
    a("v_cmp_gt_u32 s[44:45], s18, v56")
    a("s_mov_b64 exec, s[44:45]")
    a("s_waitcnt lgkmcnt(0)")
    a("s_cbranch_execz K_noload")
    a("global_load_dwordx4 v[8:11], v57, s[8:9]", "global_load_dwordx4 v[12:15], v57, s[6:7]")
    a("K_noload:", "s_mov_b64 exec, -1")
    st.stamp(1)
    a("s_or_b32 s19, s2, s16", "s_cmp_lg_u32 s19, 15", "s_cbranch_scc1 K_nononce", "s_cmp_lg_u32 s2, 0", "s_cbranch_scc1 K_nononce")
    a("s_or_b32 s56, s56, 1", "v_mov_b32 v40, s56", "v_mov_b32 v41, s57", "s_mov_b64 exec, 1", "global_store_dwordx2 v63, v[40:41], s[52:53] sc1", "s_mov_b64 exec, -1")
    a("K_nononce:")
    srd(a,12,4,5,N*128)
    a("s_cmp_ge_u32 s16, 8", "s_cselect_b32 s24, s48, s10", "s_cselect_b32 s25, s49, s11", "s_and_b32 s25, s25, 0xffff", "s_mov_b32 s26, 8192", "s_mov_b32 s27, 0x20000")
    a("buffer_load_dwordx4 v62, s[24:27], 0 offen lds")
    a("s_cmp_lt_u32 s16, 12", "s_cbranch_scc1 K_nox")
    a("buffer_load_dwordx4 v[96:99], v61, s[12:15], 0 offen", "buffer_load_dwordx4 v[100:103], v61, s[12:15], 0 offen offset:64")
    a("K_nox:")
    if o.tlb:
        a(f"s_cmp_lg_u32 s16, 14", "s_cbranch_scc1 K_notlb", "v_and_b32 v40, 63, v0", f"v_lshlrev_b32 v41, {o.tlb}, v40", "v_lshlrev_b32 v40, 15, v40", "v_min_u32 v40, 0x186000, v40")
        a("global_load_dword v104, v41, s[54:55]", f"v_add_u32 v41, {64<<16:#x}, v41" if o.tlb==16 else "s_nop 0", "v_min_u32 v41, 0x47f000, v41", "global_load_dword v105, v41, s[54:55]", "global_load_dword v106, v40, s[50:51]", "K_notlb:")
    if o.pf==1: a("s_cmp_ge_u32 s16, 7", "s_cbranch_scc1 K_nopf", "buffer_load_dword v2, v58, s[12:15], 0 offen", "K_nopf:")
    for i in range(4): a(f"v_mov_b32 v{40+i}, 0", f"v_mov_b32 v{48+i}, {MARK:#x}")
    a(f"v_cmp_gt_u32 vcc, {MISC}, v56", "s_and_saveexec_b64 s[20:21], vcc", "ds_write_b128 v56, v[40:43]", "s_mov_b64 exec, s[20:21]")
    a(f"v_add_u32 v61, {STAGE}, v56", f"v_cmp_gt_u32 vcc, {PSTR}, v56", "s_and_saveexec_b64 s[20:21], vcc", "ds_write_b128 v61, v[48:51]", "s_mov_b64 exec, s[20:21]")
    a("v_lshrrev_b32 v53, 2, v0", f"s_mul_i32 s18, s2, {PSTR}", "v_add_u32 v57, s18, v56")
    a("v_mov_b32 v55, 1")
    a("s_waitcnt lgkmcnt(0)", "s_barrier")
    a("s_cmp_lg_u32 s16, 15", "s_cbranch_scc1 K_edges")
    a("s_mov_b32 s58, 0")
    a("K_np:", "global_load_dwordx2 v[40:41], v63, s[52:53] sc1", "s_add_u32 s58, s58, 1", f"s_cmp_gt_u32 s58, {MAXPOLL}", "s_cbranch_scc1 K_end",
      "s_waitcnt vmcnt(0)", "v_readfirstlane_b32 s56, v40", "s_cmp_eq_u32 s56, 0", "s_cbranch_scc1 K_np")
    a(f"ds_write_b64 v63, v[40:41] offset:{MISC}", "s_branch K_b2")
    a("K_edges:")
    a("s_cmp_ge_u32 s16, 13", "s_cbranch_scc1 K_wb2")
    a("s_mov_b64 exec, s[44:45]")
    tail=[2 if o.pf==1 else 1, 1, 3]
    a("s_cmp_lt_u32 s16, 7", "s_cbranch_scc1 K_wa", "s_cmp_lt_u32 s16, 12", "s_cbranch_scc1 K_wb", f"s_waitcnt vmcnt({tail[2]+1})", "s_branch K_wd",
      "K_wb:", f"s_waitcnt vmcnt({tail[1]+1})", "s_branch K_wd", "K_wa:", f"s_waitcnt vmcnt({tail[0]+1})", "K_wd:")
    st.stamp(2)
    for e in range(4):
        a(f"v_lshlrev_b32_sdwa v{16+e}, 2, v{8+e} dst_sel:DWORD dst_unused:UNUSED_PAD src0_sel:DWORD src1_sel:BYTE_0")
        a(f"ds_add_rtn_u32 v{20+e}, v{16+e}, v55 offset:{HIST}")
    for e in range(4):
        a(f"v_lshlrev_b32_sdwa v{8+e}, 2, v{8+e} dst_sel:DWORD dst_unused:UNUSED_PAD src0_sel:DWORD src1_sel:BYTE_1")
    a("s_cmp_lt_u32 s16, 7", "s_cbranch_scc1 K_wa2", "K_wb2:", "s_waitcnt vmcnt(0)", "K_wa2:", f"s_waitcnt vmcnt({1 if o.pf==1 else 0})")
    for e in range(4): a(f"v_lshl_or_b32 v{12+e}, v{12+e}, 8, v{8+e}")
    a("s_mov_b64 exec, -1")
    if o.pf==2: a("s_cmp_ge_u32 s16, 7", "s_cbranch_scc1 K_b2", "buffer_load_dword v2, v58, s[12:15], 0 offen")
    a("K_b2:")
    a("s_waitcnt lgkmcnt(0)", "s_barrier")
    st.stamp(3)
    a(f"ds_read_b64 v[8:9], v63 offset:{MISC}")
    a("s_cmp_lg_u32 s16, 0", "s_cbranch_scc1 K_noscan")
    a(f"ds_read_b128 v[40:43], v56 offset:{HIST}", "s_lshl_b32 s19, s2, 11", f"s_add_u32 s19, s19, {WS_T:#x}", "v_lshl_add_u32 v58, v56, 1, s19", "s_waitcnt lgkmcnt(0)")
    a("v_readfirstlane_b32 s56, v8", "v_readfirstlane_b32 s57, v9")
    for i in range(4): a(f"v_add_u32 v{40+i}, 3, v{40+i}", f"v_lshrrev_b32 v{40+i}, 2, v{40+i}")
    a("v_add_u32 v45, v40, v41", "v_add_u32 v46, v45, v42", "v_add_u32 v47, v46, v43", "v_mov_b32 v44, v47")
    scan64(a,44)
    a("s_lshl_b32 s59, s57, 20", "v_mov_b32 v10, v44")
    a("v_sub_u32 v44, v44, v47", "v_add_u32 v47, v44, v46", "v_add_u32 v46, v44, v45", "v_add_u32 v45, v44, v40")
    for i in range(4): a(f"v_lshlrev_b32 v{48+i}, 4, v{44+i}")
    a(f"ds_write_b128 v56, v[48:51] offset:{HIST}")
    a("s_mov_b64 exec, 0x8000000000000000" if False else "s_mov_b32 exec_lo, 0\ns_mov_b32 exec_hi, 0x80000000", f"ds_write_b32 v63, v10 offset:{MISC+8}", "s_mov_b64 exec, -1")
    for i in range(4): a(f"v_lshl_or_b32 v{40+i}, v{40+i}, 10, v{44+i}")
    a("v_or_b32 v44, s59, v40", "v_mov_b32 v45, s56", "v_or_b32 v46, s59, v41", "v_mov_b32 v47, s56",
      "v_or_b32 v48, s59, v42", "v_mov_b32 v49, s56", "v_or_b32 v50, s59, v43", "v_mov_b32 v51, s56")
    a("global_store_dwordx4 v58, v[44:47], s[54:55] sc1", "global_store_dwordx4 v58, v[48:51], s[54:55] offset:16 sc1")
    a("K_noscan:", "s_waitcnt lgkmcnt(0)", "s_barrier")
    a("v_readfirstlane_b32 s56, v8", "v_readfirstlane_b32 s57, v9")
    a(f"ds_read_b32 v10, v63 offset:{MISC+8}")
    a("s_mov_b64 exec, s[44:45]")
    for e in range(4): a(f"ds_read_b32 v{16+e}, v{16+e} offset:{HIST}")
    a("s_lshl_b32 s59, s57, 20", "s_lshl_b32 s92, s56, 22", "s_lshr_b32 s93, s56, 10", "s_lshl_b32 s93, s93, 22", "s_lshr_b32 s94, s56, 20", "s_lshl_b32 s94, s94, 22",
      "s_lshr_b64 s[96:97], s[56:57], 30", "s_lshl_b32 s95, s96, 22")
    a(f"s_mov_b32 s58, {STAGE}")
    for e in range(4):
        a("s_waitcnt lgkmcnt(3)")
        a(f"v_lshl_add_u32 v{16+e}, v{20+e}, 2, v{16+e}", f"v_add_u32 v{16+e}, s58, v{16+e}", f"ds_write_b32 v{16+e}, v{12+e}")
    a("s_mov_b64 exec, -1")
    a("v_lshlrev_b32 v10, 4, v10")
    a("s_lshl_b32 s18, s17, 3", f"s_add_u32 s18, s18, {WS_T:#x}", "v_lshl_add_u32 v58, v53, 11, s18")
    a("s_waitcnt lgkmcnt(0)", "s_barrier")
    st.stamp(4)
    a("ds_read_b128 v[40:43], v61")
    a("global_load_dwordx2 v[8:9], v58, s[54:55] sc1")
    a("v_cmp_gt_u32 vcc, v10, v56", "s_and_saveexec_b64 s[20:21], vcc", "s_mov_b32 s58, 0", "s_cbranch_execz K_nost")
    a("s_mov_b32 s58, 1", "s_waitcnt lgkmcnt(0)")
    for i in range(4): a(f"v_or_b32 v{40+i}, s{92+i}, v{40+i}")
    a("global_store_dwordx4 v57, v[40:43], s[54:55] sc1")
    a("K_nost:", "s_mov_b64 exec, -1")
    st.stamp(5)
    a("s_nop 0")
    for i in range(4): a(f"v_mov_b32 v{44+i}, {SENT:#x}")
    fill_list(56,44)
    a("v_and_b32 v52, 3, v0", "v_lshlrev_b32 v1, 4, v52")
    a("s_mov_b32 s22, 0xaaaaaaaa", "s_mov_b32 s23, 0xaaaaaaaa", "s_mov_b32 s28, 0xcccccccc", "s_mov_b32 s29, 0xcccccccc")
    a("v_mov_b32 v3, 0xffff", "v_mov_b32 v4, 0xffff0000", "v_cndmask_b32 v4, v3, v4, s[22:23]",
      "v_cndmask_b32 v3, v4, v63, s[28:29]", "v_cndmask_b32 v4, v63, v4, s[28:29]")
    a("s_mov_b32 s30, 0xbe38aa3b", f"s_mov_b32 s31, {PSTR}", "v_mul_u32_u24 v62, s31, v53", "v_add_u32 v62, v62, v1")
    a("s_mov_b32 s33, 0", "s_mov_b32 s37, 0", f"s_mov_b32 s31, {LS//4}", f"s_movk_i32 s43, {MARK}")
    a("v_lshrrev_b32 v7, 4, v0", "v_min_u32 v6, 48, v7")
    a(f"v_mul_u32_u24 v5, {LS}, v6", "v_bfe_u32 v54, v0, 2, 2", "v_lshl_add_u32 v5, v54, 2, v5")
    a("v_sub_u32 v54, v7, v6", "v_lshl_add_u32 v5, v54, 6, v5")
    a("v_lshlrev_b32 v6, 1, v6", "v_sub_u32 v6, v1, v6")
    for r in range(24,40): a(f"v_mov_b32 v{r}, 0")
    for r in range(XB,XB+32): a(f"v_mov_b32 v{r}, 0")
    a("s_waitcnt lgkmcnt(0)", "s_barrier")
    a("s_cmp_lt_u32 s16, 12", "s_cbranch_scc1 K_noq")
    a("v_bfe_u32 v16, v0, 2, 2", "v_lshl_add_u32 v16, v60, 3, v16", "v_lshlrev_b32 v16, 7, v16", "v_lshl_add_u32 v16, v1, 1, v16")
    for k in range(2):
        for T in range(4):
            for hh in range(2):
                r=64+T*8+k*4+hh*2
                a(f"ds_read_b64_tr_b16 v[{r}:{r+1}], v16 offset:{WQL+k*4096+hh*512+8*T}")
    a(f"v_mul_u32_u24 v17, {RS}, v59", "v_lshl_add_u32 v17, v60, 5, v17")
    for k in range(2):
        a(f"s_waitcnt lgkmcnt({8-8*k})")
        for T in range(4):
            d=104+T*4; A=64+T*8+k*4; B=96+k*4
            a(f"v_mfma_f32_16x16x32_bf16 v[{d}:{d+3}], v[{A}:{A+3}], v[{B}:{B+3}], "+("0" if k==0 else f"v[{d}:{d+3}]"))
    for r in range(XB,XB+32): a(f"v_mov_b32 v{r}, 0")
    for T in range(4):
        d=104+T*4; r=96+2*T
        a(f"v_cvt_pk_bf16_f32 v{r}, v{d}, v{d+1}", f"v_cvt_pk_bf16_f32 v{r+1}, v{d+2}, v{d+3}")
    a(f"ds_write_b128 v17, v[96:99] offset:{QL}", f"ds_write_b128 v17, v[100:103] offset:{QL+16}")
    a("K_noq:")
    a("s_cmp_eq_u32 s58, 0", "s_cbranch_scc1 K_tp", "s_waitcnt vmcnt(1)", "s_branch K_tp1")
    a("K_tp:", "s_waitcnt vmcnt(0)", "K_tp1:")
    a("v_xor_b32 v2, s59, v8", "v_xor_b32 v9, s56, v9", "v_lshrrev_b32 v8, 20, v2", "v_or_b32 v9, v9, v8", "v_cmpx_ne_u32 vcc, 0, v9", "s_cbranch_execz K_tok")
    if o.sleep: a(f"s_sleep {o.sleep}")
    a("global_load_dwordx2 v[8:9], v58, s[54:55] sc1", "s_add_u32 s58, s58, 1", f"s_cmp_lt_u32 s58, {MAXPOLL}", "s_cbranch_scc1 K_tp", "s_endpgm")
    a("K_tok:", "s_mov_b64 exec, -1")
    st.stamp(6)
    a("K_batch:")
    a("v_and_b32 v56, 0x3ff, v2", "v_lshrrev_b32 v57, 10, v2", "v_add_u32 v56, s33, v56", "v_lshl_add_u32 v56, v56, 4, v62")
    a("v_subrev_u32 v57, s33, v57", "v_cmp_lt_i32 s[40:41], 8, v57", "v_sub_u32 v57, v57, v52")
    a("v_cmp_lt_i32 s[44:45], 0, v57", "v_cmp_lt_i32 s[46:47], 4, v57")
    for r in range(40,48): a(f"v_mov_b32 v{r}, s43")
    a("v_mov_b32 v58, 1")
    a("s_mov_b32 s58, 0")
    a("K_ep:")
    a("s_mov_b64 exec, s[44:45]", "s_cbranch_execz K_e1", "global_load_dwordx4 v[40:43], v56, s[54:55] sc1", "K_e1:")
    a("s_mov_b64 exec, s[46:47]", "s_cbranch_execz K_e2", "global_load_dwordx4 v[44:47], v56, s[54:55] offset:64 sc1", "K_e2:")
    a("s_mov_b32 s18, 0x400000", "s_waitcnt vmcnt(0)")
    for s in range(2):
        b=40+4*s
        a(f"s_mov_b64 exec, s[{44+2*s}:{45+2*s}]")
        for i in range(4): a(f"v_xor_b32 v{b+i}, s{92+i}, v{b+i}")
        a(f"v_or3_b32 v48, v{b}, v{b+1}, v{b+2}", f"v_or_b32 v48, v48, v{b+3}", f"v_cmp_le_u32 s[{44+2*s}:{45+2*s}], s18, v48")
    a("s_mov_b64 exec, -1", "s_or_b64 s[20:21], s[44:45], s[46:47]", "s_cbranch_scc0 K_eok")
    if o.sleep: a(f"s_sleep {o.sleep}")
    a("s_add_u32 s58, s58, 1", f"s_cmp_lt_u32 s58, {MAXPOLL}", "s_cbranch_scc1 K_ep", "s_endpgm")
    a("K_eok:")
    st.stamp(7)
    a("s_cmp_eq_u64 s[40:41], 0", "s_cbranch_scc1 K_noflag", "v_mov_b32 v16, 0x40000000", f"ds_or_b32 v63, v16 offset:{CNT+252}", "K_noflag:")
    for s in range(2):
        for e in range(4):
            r=40+4*s+e
            a(f"v_and_b32 v{r+8}, 0xff, v{r}")
        for e in range(4):
            r=40+4*s+e
            a(f"v_cmpx_ne_u32 vcc, s43, v{r+8}")
            if s==1: a(f"s_cbranch_execz K_at_done")
            a(f"ds_add_rtn_u32 v{8+4*s+e}, v{r+8}, v58 offset:{CNT}")
        if s==1: a("K_at_done:")
        a("s_mov_b64 exec, -1")
    for r in range(40,48): a(f"v_lshrrev_b32 v{r}, 1, v{r}", f"v_mul_u32_u24 v{r+8}, s31, v{r+8}")
    a(f"s_mov_b32 s18, {MARK*(LS//4)}")
    a("s_waitcnt lgkmcnt(0)")
    for s in range(2):
        for e in range(4):
            r=40+4*s+e
            a(f"v_cmpx_ne_u32 vcc, s18, v{r+8}")
            if s==1: a(f"s_cbranch_execz K_sc_done")
            a(f"v_lshl_add_u32 v{r+8}, v{8+4*s+e}, 2, v{r+8}", f"ds_write_b32 v{r+8}, v{r} offset:{LIST}")
        if s==1: a(f"K_sc_done:")
        a("s_mov_b64 exec, -1")
    a("v_and_b32 v56, 63, v0", "v_lshlrev_b32 v56, 2, v56", "v_min_u32 v59, 48, v7", f"v_mul_u32_u24 v60, {RS}, v59", "v_add_u32 v60, v60, v1", "v_lshlrev_b32 v59, 2, v59")
    a("s_waitcnt lgkmcnt(0)", "s_barrier")
    st.stamp(8)
    a(f"ds_read_b32 v56, v56 offset:{CNT}", f"ds_read_b32 v59, v59 offset:{CNT}")
    a(f"ds_read_b128 v[16:19], v60 offset:{QL}", f"ds_read_b128 v[20:23], v60 offset:{QL+64}")
    a("s_waitcnt lgkmcnt(3)")
    a("v_readlane_b32 s34, v56, 63", "v_and_b32 v56, 0xffff, v56", f"s_movk_i32 s35, {CAP}", "v_cmp_lt_u32 vcc, s35, v56")
    a("s_cbranch_vccnz K_ovf")
    a("s_mov_b32 s38, 0")
    a("K_pass:")
    a("s_cmp_gt_u32 s16, 12", "s_cbranch_scc1 K_rdone")
    a("s_waitcnt lgkmcnt(2)")
    a("v_readlane_b32 s35, v59, 0", "v_readlane_b32 s36, v59, 16", "v_readlane_b32 s39, v59, 32", "v_readlane_b32 s40, v59, 48")
    a("s_max_u32 s35, s35, s36", "s_max_u32 s39, s39, s40", "s_max_u32 s35, s35, s39")
    a("s_sub_i32 s35, s35, s37", "s_max_i32 s35, s35, 0", f"s_min_u32 s35, s35, {CAP}")
    a("s_movk_i32 s41, 64")
    a("s_cmp_lg_u32 s16, 12", "s_cbranch_scc1 K_norm")
    a("s_and_b32 s36, s35, 63", "s_min_u32 s36, s36, 16", "s_lshr_b32 s35, s35, 6", "s_lshl_b32 s35, s35, 4", "s_add_u32 s35, s35, s36", "s_movk_i32 s41, 256")
    a("K_norm:")
    a("s_add_u32 s35, s35, 3", "s_lshr_b32 s35, s35, 2")
    a("s_cmp_eq_u32 s35, 0", "s_cbranch_scc1 K_rdone")
    a("s_sub_u32 s36, s35, 1", "s_and_b32 s39, s36, 3", "s_lshr_b32 s36, s36, 2")
    a("s_mul_i32 s40, s36, s41", "v_add_u32 v56, s40, v5", "v_mov_b32 v57, v5")
    def rd(ereg,va):
        a(f"ds_read2_b32 v[{ereg}:{ereg+1}], v{va} offset0:0 offset1:4", f"ds_read2_b32 v[{ereg+2}:{ereg+3}], v{va} offset0:8 offset1:12")
    a(f"v_add_u32 v56, {LIST}, v56", f"v_add_u32 v57, {LIST}, v57")
    rd(8,56); rd(12,57)
    a("v_add_u32 v57, s41, v57")
    def load1(b,t,ereg):
        a(f"v_add_u32 v{ereg+t}, v{ereg+t}, v6")
        a(f"buffer_load_dwordx4 v[{b+8*t}:{b+8*t+3}], v{ereg+t}, s[12:15], 0 offen",
          f"buffer_load_dwordx4 v[{b+8*t+4}:{b+8*t+7}], v{ereg+t}, s[12:15], 0 offen offset:64")
    a("s_waitcnt lgkmcnt(2)")
    for t in range(4):
        load1(XB,t,8)
        if t<3: a(f"s_cmp_eq_u32 s39, {t}", "s_cbranch_scc1 K_t0")
    a("K_t0:")
    a("s_cmp_eq_u32 s36, 0", "s_cbranch_scc1 K_last0")
    a("s_waitcnt lgkmcnt(0)")
    for t in range(4): load1(XB+32,t,12)
    def compute(b):
        for z in range(4):
            for t in range(4):
                A=b+8*t+2*z; D=40+4*t
                a(f"v_mfma_f32_4x4x4_16b_bf16 v[{D}:{D+3}], v[{A}:{A+1}], v[{16+2*z}:{17+2*z}], "+("0" if z==0 else f"v[{D}:{D+3}]"))
        a("s_nop 1")
        for k in range(3):
            for t in range(4):
                j=[x for x in range(4) if x!=t][k]
                a(f"v_add_f32_dpp v{40+4*t+t}, v{40+4*t+j}, v{40+4*t+t} quad_perm:[{j},{j},{j},{j}] row_mask:0xf bank_mask:0xf")
        a("v_cndmask_b32 v40, v40, v45, s[22:23]", "v_cndmask_b32 v50, v50, v55, s[22:23]", "v_cndmask_b32 v56, v40, v50, s[28:29]")
        a("v_mul_f32 v56, s30, v56", "v_exp_f32 v56, v56", "s_nop 0", "v_add_f32 v56, 1.0, v56", "v_rcp_f32 v56, v56", "s_nop 0",
          "v_cvt_pk_bf16_f32 v56, v56, v56", "s_nop 1")
        for t in range(4):
            a(f"v_and_b32_dpp v{40+2*t}, v56, v3 quad_perm:[{t},{t},{t},{t}] row_mask:0xf bank_mask:0xf",
              f"v_and_b32_dpp v{41+2*t}, v56, v4 quad_perm:[{t},{t},{t},{t}] row_mask:0xf bank_mask:0xf")
        for t in range(4):
            for z in range(4):
                A=b+8*t+2*z; D=24+4*z
                a(f"v_mfma_f32_4x4x4_16b_bf16 v[{D}:{D+3}], v[{A}:{A+1}], v[{40+2*t}:{41+2*t}], v[{D}:{D+3}]")
    for h in range(2):
        b=XB+32*h
        a(f"K_loop{h}:")
        a("s_cmp_lt_u32 s36, 2", f"s_cbranch_scc1 K_nord{h}")
        rd(8,57); a("v_add_u32 v57, s41, v57")
        a(f"K_nord{h}:")
        a("s_waitcnt vmcnt(8)")
        compute(b)
        a("s_sub_u32 s36, s36, 1", "s_cmp_eq_u32 s36, 0", f"s_cbranch_scc1 K_last{1-h}")
        a("s_waitcnt lgkmcnt(0)")
        for t in range(4): load1(b,t,8)
        if h==1: a("s_branch K_loop0")
    for h in range(2):
        a(f"K_last{h}:", "s_waitcnt vmcnt(0) lgkmcnt(0)")
        compute(XB+32*h)
        if h==0: a("s_branch K_rdone")
    a("K_rdone:")
    st.stamp(9)
    a("s_or_b32 s35, s34, s38", "s_cmp_lg_u32 s35, 0", "s_cbranch_scc1 K_more")
    a("s_cmp_gt_u32 s16, 12", "s_cbranch_scc1 K_epi")
    a(f"v_mul_u32_u24 v56, {RS}, v7", "v_and_b32 v57, 15, v0", "v_lshl_add_u32 v56, v57, 3, v56", "s_nop 1")
    for z in range(2):
        for j in range(4):
            r=24+4*z+j
            a(f"v_add_f32_dpp v{r}, v{r}, v{r} row_ror:8 row_mask:0xf bank_mask:0x3")
    for z in range(2):
        for j in range(4):
            r=24+4*z+j
            a(f"v_add_f32_dpp v{r}, v{r+8}, v{r+8} row_ror:8 row_mask:0xf bank_mask:0xc")
    for j in range(4): a(f"v_add_f32_dpp v{24+j}, v{24+j}, v{24+j} row_shl:4 row_mask:0xf bank_mask:0x5")
    for j in range(4): a(f"v_add_f32_dpp v{24+j}, v{28+j}, v{28+j} row_shr:4 row_mask:0xf bank_mask:0xa")
    a("v_cvt_pk_bf16_f32 v24, v24, v25", "v_cvt_pk_bf16_f32 v25, v26, v27", f"ds_write_b64 v56, v[24:25] offset:{AGG}")
    a("s_cmp_lt_u32 s16, 12", "s_cbranch_scc1 K_wait_end")
    a("K_epi:")
    a("v_and_b32 v10, 15, v0", "v_bfe_u32 v11, v0, 4, 2", "v_lshlrev_b32 v9, 8, v11", "v_lshl_add_u32 v9, v10, 3, v9")
    for half in range(2):
        for f in range(4*half,4*half+4):
            T=f>>1; k=f&1
            for e in range(8):
                a(f"ds_read_u16 v{96+8*(f&3)+e}, v9 offset:{WVL+4096*k+2*T+(8*(e&3)+(e>>2))*128}")
        a("s_waitcnt lgkmcnt(0)")
        for f in range(4*half,4*half+4):
            for i in range(4): a(f"v_lshl_or_b32 v{64+4*f+i}, v{97+8*(f&3)+2*i}, 16, v{96+8*(f&3)+2*i}")
    a("v_bfe_u32 v12, v0, 6, 2", "v_lshl_add_u32 v13, v12, 4, v10", f"v_mul_u32_u24 v13, {RS}, v13", "v_lshl_add_u32 v13, v11, 4, v13")
    a("v_lshl_add_u32 v14, v12, 2, v11", "v_lshlrev_b32 v14, 17, v14", "v_lshl_add_u32 v14, v10, 3, v14", "s_lshl_b32 s19, s17, 7", "v_add_u32 v14, s19, v14")
    for i in range(1,4): a(f"v_add_u32 v{14+i}, {32768*i:#x}, v14")
    srd(a,24,50,51,N*128)
    a("s_waitcnt lgkmcnt(0)", "s_barrier")
    st.stamp(10)
    for k in range(2): a(f"ds_read_b128 v[{40+4*k}:{43+4*k}], v13 offset:{AGG+64*k}")
    for k in range(2):
        a(f"s_waitcnt lgkmcnt({1-k})")
        for T in range(4):
            B=64+4*(2*T+k); D=96+4*T
            a(f"v_mfma_f32_16x16x32_bf16 v[{D}:{D+3}], v[{40+4*k}:{43+4*k}], v[{B}:{B+3}], "+("0" if k==0 else f"v[{D}:{D+3}]"))
    a("s_nop 7")
    a("s_cmp_lg_u32 s16, 15", "s_cbranch_scc1 K_nosum")
    a("s_cmp_lg_u32 s2, 0", "s_cbranch_scc1 K_noclr", "v_mov_b32 v62, 0", "s_mov_b64 exec, 1", "global_store_dwordx2 v63, v[62:63], s[52:53] sc1", "s_mov_b64 exec, -1", "K_noclr:")
    for T in range(4): a(f"v_add_f32 v{96+4*T}, v{96+4*T}, v{97+4*T}", f"v_add_f32 v{98+4*T}, v{98+4*T}, v{99+4*T}")
    for T in range(4): a(f"v_add_f32 v{96+4*T}, v{96+4*T}, v{98+4*T}")
    a("K_nosum:")
    for i in range(4):
        a(f"v_cvt_pk_bf16_f32 v{24+2*i}, v{96+i}, v{100+i}", f"v_cvt_pk_bf16_f32 v{25+2*i}, v{104+i}, v{108+i}")
        a(f"buffer_store_dwordx2 v[{24+2*i}:{25+2*i}], v{14+i}, s[24:27], 0 offen{o.sto}")
    if o.stamps:
        a("s_waitcnt vmcnt(0)"); st.stamp(11)
        a("s_cmp_lg_u32 s16, 13", "s_cbranch_scc1 K_end")
        st3=Stamps(a,True,84,10,2); st3.store(54,44,nm)
    a("s_endpgm")
    a("K_wait_end:", "s_waitcnt lgkmcnt(0)", "s_barrier")
    if o.stamps:
        a(f"s_cmp_lg_u32 s16, {o.sw}", "s_cbranch_scc1 K_end")
        st.n=10; st.store(54,44,nm)
    a("K_end:", "s_endpgm")
    a("K_ovf:")
    a("v_lshlrev_b32 v61, 4, v0", f"v_add_u32 v61, {SPILL}, v61")
    a("ds_write_b128 v61, v[40:43]", "ds_write_b128 v61, v[44:47] offset:16384", "ds_write_b128 v61, v[8:11] offset:32768", "ds_write_b128 v61, v[12:15] offset:49152")
    a("s_mov_b32 s42, 0", "s_mov_b32 s35, 0", "K_mx:", "v_readlane_b32 s36, v56, s35", "s_max_u32 s42, s42, s36", "s_add_u32 s35, s35, 1", "s_cmp_lt_u32 s35, 49", "s_cbranch_scc1 K_mx")
    a("s_mov_b32 s37, 0")
    a("K_npass:")
    a("s_waitcnt lgkmcnt(0)", "s_barrier")
    a("v_lshlrev_b32 v56, 4, v0")
    for i in range(4): a(f"v_mov_b32 v{44+i}, {SENT:#x}")
    fill_list(56,44)
    a("s_waitcnt lgkmcnt(0)", "s_barrier")
    a(f"v_add_u32 v61, {SPILL}, v56")
    a("ds_read_b128 v[40:43], v61", "ds_read_b128 v[44:47], v61 offset:16384", "ds_read_b128 v[8:11], v61 offset:32768", "ds_read_b128 v[12:15], v61 offset:49152")
    a(f"s_movk_i32 s35, {CAP}", f"s_movk_i32 s36, {LS//2}", f"s_movk_i32 s39, {MARK>>1}")
    a("s_waitcnt lgkmcnt(0)")
    for i in range(8):
        a(f"v_subrev_u32 v{8+i}, s37, v{8+i}", f"v_and_b32 v49, 127, v{40+i}", "v_mul_u32_u24 v48, s36, v49", f"v_lshl_add_u32 v48, v{8+i}, 2, v48")
        a(f"v_cmpx_ne_u32 vcc, s39, v49", f"v_cmpx_gt_u32 vcc, s35, v{8+i}", f"ds_write_b32 v48, v{40+i} offset:{LIST}", "s_mov_b64 exec, -1")
    for r in range(XB,XB+32): a(f"v_mov_b32 v{r}, 0")
    a("v_min_u32 v59, 48, v7", "v_lshlrev_b32 v59, 2, v59")
    a("s_waitcnt lgkmcnt(0)", "s_barrier")
    a(f"ds_read_b32 v59, v59 offset:{CNT}", f"s_add_u32 s35, s37, {CAP}", "s_cmp_lt_u32 s35, s42", "s_cselect_b32 s38, 1, 0", "s_waitcnt lgkmcnt(0)", "s_branch K_pass")
    a("K_more:")
    a("s_cmp_eq_u32 s38, 0", "s_cbranch_scc1 K_next", f"s_add_u32 s37, s37, {CAP}", "s_branch K_npass")
    a("K_next:")
    a("s_waitcnt lgkmcnt(0)", "s_barrier")
    a("v_lshlrev_b32 v56, 4, v0")
    for i in range(4): a(f"v_mov_b32 v{40+i}, 0", f"v_mov_b32 v{44+i}, {SENT:#x}")
    a("v_cmp_gt_u32 vcc, 256, v56", "s_and_saveexec_b64 s[20:21], vcc", f"ds_write_b128 v56, v[40:43] offset:{CNT}", "s_mov_b64 exec, s[20:21]")
    fill_list(56,44)
    for r in range(XB,XB+32): a(f"v_mov_b32 v{r}, 0")
    a("v_and_b32 v52, 3, v0")
    a("s_add_u32 s33, s33, 8", "s_mov_b32 s37, 0", "s_waitcnt lgkmcnt(0)", "s_barrier", "s_branch K_batch")
    return a.text()+kd(nm,128,100)

HDR="""; gather_scatter (FeatGraph-style SDDMM + SpMM), one launch of 256 co-resident workgroups (one per CU):
; @launch grid=(256,1,1) block=(1024,1,1) lds=%d
.amdgcn_target "amdgcn-amd-amdhsa--gfx950"
.text
"""
if __name__=="__main__":
    ap=argparse.ArgumentParser()
    ap.add_argument("-o",default="k3.s"); ap.add_argument("--stamps",action="store_true")
    ap.add_argument("--pf",type=int,default=1); ap.add_argument("--sleep",type=int,default=2); ap.add_argument("--sw",type=int,default=0); ap.add_argument("--tlb",type=int,default=0); ap.add_argument("--sto",default="")
    o=ap.parse_args()
    if o.sto: o.sto=' '+o.sto
    txt=HDR%LDS+gen(o)
    open(o.o,"w").write(txt)
    build(o.o,o.o.replace(".s",".co"))
    print("built",o.o,"lds",LDS)
```

```python
import sys, argparse
from build import build
from gen import Asm, kd, head, srd, Stamps, N, E, EPW, WS_STAMP, NSTAMP
SENT=0x7FFFFF80; MARK=0xFC
PIN=EPW*4; PSTR=15616; WS_T=0x400000
HIST=0; CNT=1024; MISC=1280; AGG=1312; RS=144; QL=AGG+64*RS; WQL=QL+64*RS; WVL=WQL+8192; LIST=WVL+8192; LS=528; CAP=128; LISTB=49*LS
SPILL=(LIST+LISTB+15)//16*16; STAGE=SPILL+65536; LDS=STAGE+PSTR
MAXPOLL=200000; BIAS=200
DPPS=["row_shr:1 row_mask:0xf bank_mask:0xf bound_ctrl:0","row_shr:2 row_mask:0xf bank_mask:0xf bound_ctrl:0","row_shr:4 row_mask:0xf bank_mask:0xf bound_ctrl:0",
      "row_shr:8 row_mask:0xf bank_mask:0xf bound_ctrl:0","row_bcast:15 row_mask:0xa bank_mask:0xf","row_bcast:31 row_mask:0xc bank_mask:0xf"]
def scan_fill(a,v,fill):
    fill=list(fill)
    for d in DPPS:
        for _ in range(2): a(fill.pop(0) if fill else "s_nop 0")
        a(f"v_add_u32_dpp v{v}, v{v}, v{v} {d}")
    for f in fill: a(f)

def gen(o):
    a=Asm(); st=Stamps(a,o.stamps,64,0,14)
    nm="gather_scatter__kernel_systems_refs_featgraph__graph_kernel"
    XB=64
    def fill_list(vaddr,vd):
        a(f"ds_write_b128 v{vaddr}, v[{vd}:{vd+3}] offset:{LIST}")
        a(f"v_cmp_gt_u32 vcc, {LISTB-16384}, v{vaddr}", "s_and_saveexec_b64 s[20:21], vcc", f"ds_write_b128 v{vaddr}, v[{vd}:{vd+3}] offset:{LIST+16384}", "s_mov_b64 exec, s[20:21]")
    a(head(nm)); st.stamp(0)
    a("s_load_dwordx8 s[4:11], s[0:1], 0",
      "s_load_dwordx8 s[48:55], s[0:1], 32")
    a("s_cmp_ge_u32 s2, 256", "s_cbranch_scc1 K_end")
    if o.delay:
        a("s_and_b32 s60, s2, 31", "s_cmp_lg_u32 s60, 5", "s_cbranch_scc1 K_nodelay", "s_memrealtime s[60:61]", "s_waitcnt lgkmcnt(0)", "K_dl:", "s_memrealtime s[56:57]", "s_waitcnt lgkmcnt(0)",
          "s_sub_u32 s56, s56, s60", f"s_cmp_lt_u32 s56, {o.delay}", "s_cbranch_scc1 K_dl", "K_nodelay:")
    a("s_memrealtime s[56:57]")
    a("v_lshrrev_b32 v1, 6, v0", "v_lshlrev_b32 v56, 4, v0", "v_readfirstlane_b32 s16, v1")
    a(f"s_mul_i32 s18, s2, {PIN}", "v_add_u32 v57, s18, v56", f"s_sub_u32 s18, {E*4}, s18", f"s_min_u32 s18, s18, {PIN}")
    a("v_cmp_gt_u32 s[44:45], s18, v56")
    a("s_and_b32 s17, s2, 7", "s_lshl_b32 s17, s17, 5", "s_lshr_b32 s19, s2, 3", "s_or_b32 s17, s17, s19")
    for i in range(4): a(f"v_mov_b32 v{40+i}, 3", f"v_mov_b32 v{48+i}, {MARK:#x}")
    a(f"v_add_u32 v61, {STAGE}, v56", "v_mov_b32 v63, 0", "v_mov_b32 v55, 1")
    a("s_waitcnt lgkmcnt(0)")
    a("s_mov_b64 exec, s[44:45]")
    a("s_cbranch_execz K_noload")
    a(f"global_load_dwordx4 v[8:11], v57, s[8:9]{o.ldf}")
    if not o.late: a(f"global_load_dwordx4 v[12:15], v57, s[6:7]{o.ldf}")
    a("K_noload:", "s_mov_b64 exec, -1")
    st.stamp(1)
    a("s_cmp_lg_u32 s16, 0", "s_cbranch_scc1 K_nz", f"ds_write_b128 v56, v[40:43] offset:{HIST}", "K_nz:")
    a(f"v_cmp_gt_u32 vcc, {PSTR}, v56", "s_and_saveexec_b64 s[20:21], vcc", "ds_write_b128 v61, v[48:51]", "s_mov_b64 exec, s[20:21]")
    if o.late:
        a("s_mov_b64 exec, s[44:45]", "s_cbranch_execz K_noload2", f"global_load_dwordx4 v[12:15], v57, s[6:7]{o.ldf}", "K_noload2:", "s_mov_b64 exec, -1")
    srd(a,12,4,5,N*128)
    a("s_lshl_b32 s19, s16, 10", f"s_add_u32 s19, s19, {WQL}", "s_mov_b32 m0, s19", "v_and_b32 v62, 0x1fff, v56")
    a("s_cmp_ge_u32 s16, 8", "s_cselect_b32 s24, s48, s10", "s_cselect_b32 s25, s49, s11", "s_and_b32 s25, s25, 0xffff", "s_mov_b32 s26, 8192", "s_mov_b32 s27, 0x20000")
    a("buffer_load_dwordx4 v62, s[24:27], 0 offen lds")
    a("v_lshrrev_b32 v53, 2, v0", f"s_mul_i32 s18, s2, {PSTR}", "v_add_u32 v57, s18, v56")
    a("v_and_b32 v52, 0x3ff, v56", "s_lshl_b32 s19, s2, 11", f"s_add_u32 s19, s19, {WS_T:#x}", "v_lshl_add_u32 v58, v52, 1, s19")
    a("s_cmp_lt_u32 s16, 12", "s_cbranch_scc1 K_nox")
    a("v_and_b32 v59, 15, v0", "v_bfe_u32 v60, v0, 4, 2", "v_bfe_u32 v62, v0, 6, 2", "v_lshl_add_u32 v59, v62, 4, v59")
    a("v_lshlrev_b32 v62, 15, v59", "v_lshl_add_u32 v62, v60, 4, v62", "s_lshl_b32 s19, s17, 7", "v_add_u32 v62, s19, v62")
    a("buffer_load_dwordx4 v[96:99], v62, s[12:15], 0 offen", "buffer_load_dwordx4 v[100:103], v62, s[12:15], 0 offen offset:64")
    if o.tlb:
        a(f"s_cmp_lg_u32 s16, 15", "s_cbranch_scc1 K_nox", "v_and_b32 v40, 63, v0", f"v_lshlrev_b32 v41, 16, v40", "v_lshlrev_b32 v40, 15, v40", "v_min_u32 v40, 0x186000, v40")
        a("global_load_dword v104, v41, s[54:55]", f"v_add_u32 v41, {64<<16:#x}, v41", "v_min_u32 v41, 0x47f000, v41", "global_load_dword v105, v41, s[54:55]", "global_load_dword v106, v40, s[50:51]")
    a("K_nox:")
    a("s_waitcnt lgkmcnt(0)", "s_barrier")
    a("s_cmp_lt_u32 s16, 12", "s_cbranch_scc1 K_eA", "s_cmp_eq_u32 s16, 12", "s_cbranch_scc0 K_b2")
    a("K_eB:", "s_waitcnt vmcnt(4)", "K_eA:", "s_waitcnt vmcnt(2)" )
    a.L[-4:]=[]; a("K_eB:", "s_waitcnt vmcnt(4)", "s_branch K_eC", "K_eA:", "s_waitcnt vmcnt(2)", "K_eC:")
    a("s_mov_b64 exec, s[44:45]")
    st.stamp(2)
    for e in range(4):
        a(f"v_lshlrev_b32_sdwa v{16+e}, 2, v{8+e} dst_sel:DWORD dst_unused:UNUSED_PAD src0_sel:DWORD src1_sel:BYTE_0")
        a(f"ds_add_rtn_u32 v{20+e}, v{16+e}, v55 offset:{HIST}")
    for e in range(4):
        a(f"v_lshlrev_b32_sdwa v{8+e}, 2, v{8+e} dst_sel:DWORD dst_unused:UNUSED_PAD src0_sel:DWORD src1_sel:BYTE_1")
    a("s_mov_b64 exec, -1")
    a("K_b2:")
    a("s_waitcnt lgkmcnt(0)", "s_barrier")
    st.stamp(3)
    a("s_cmp_eq_u32 s16, 13", "s_cbranch_scc1 K_scanB", "s_cmp_lg_u32 s16, 14", "s_cbranch_scc1 K_noscan")
    a(f"ds_read_b128 v[40:43], v52 offset:{HIST}", "s_memrealtime s[60:61]", "s_waitcnt lgkmcnt(0)")
    for i in range(4): a(f"v_lshrrev_b32 v{40+i}, 2, v{40+i}")
    a("v_add3_u32 v44, v40, v41, v42", f"s_add_u32 s60, s60, {BIAS}", "v_add_u32 v44, v44, v43", "s_addc_u32 s61, s61, 0")
    scan_fill(a,44,["s_lshl_b32 s92, s60, 22", "s_lshr_b32 s93, s60, 10", "s_lshl_b32 s93, s93, 22", "s_lshr_b32 s94, s60, 20", "s_lshl_b32 s94, s94, 22", "s_lshr_b64 s[96:97], s[60:61], 30",
                    "s_lshl_b32 s95, s96, 22", "v_mov_b32 v16, s92", "v_mov_b32 v17, s93", "v_mov_b32 v18, s94", "v_mov_b32 v19, s95", "s_lshl_b32 s59, s61, 20"])
    a(f"ds_write_b128 v63, v[16:19] offset:{MISC}", "v_mov_b32 v49, s60", "v_mov_b32 v51, s60", f"ds_write_b32 v63, v49 offset:{MISC+20}", "s_waitcnt lgkmcnt(0)")
    a("s_barrier")
    a("v_sub_u32 v47, v44, v43", "v_sub_u32 v46, v47, v42", "v_sub_u32 v45, v46, v41", "v_sub_u32 v44, v45, v40")
    for i in range(4): a(f"v_lshl_or_b32 v{40+i}, v{40+i}, 10, v{44+i}")
    a("v_or_b32 v44, s59, v40", "v_mov_b32 v45, s60", "v_or_b32 v46, s59, v41", "v_mov_b32 v47, s60",
      "v_or_b32 v48, s59, v42", "v_or_b32 v50, s59, v43")
    a("global_store_dwordx4 v58, v[44:47], s[54:55] sc1", "global_store_dwordx4 v58, v[48:51], s[54:55] offset:16 sc1", "s_branch K_b3done")
    a("K_scanB:")
    a(f"ds_read_b128 v[40:43], v52 offset:{HIST}", f"s_mov_b32 s58, {STAGE-12}", "s_waitcnt lgkmcnt(0)")
    for i in range(4): a(f"v_lshrrev_b32 v{40+i}, 2, v{40+i}")
    a("v_add3_u32 v44, v40, v41, v42", "v_add_u32 v44, v44, v43")
    scan_fill(a,44,["v_lshlrev_b32 v51, 4, v43", "v_lshlrev_b32 v50, 4, v42", "v_sub_u32 v51, s58, v51", "v_lshlrev_b32 v49, 4, v41",
                    "v_sub_u32 v50, v51, v50", "v_lshlrev_b32 v48, 4, v40", "v_sub_u32 v49, v50, v49", "v_sub_u32 v48, v49, v48"])
    for i in range(4): a(f"v_lshl_add_u32 v{48+i}, v44, 4, v{48+i}")
    a(f"ds_write_b128 v52, v[48:51] offset:{AGG}")
    a("s_mov_b32 exec_lo, 0", "s_mov_b32 exec_hi, 0x80000000", f"ds_write_b32 v63, v44 offset:{MISC+16}", "s_mov_b64 exec, -1")
    a("K_noscan:", "s_waitcnt lgkmcnt(0)", "s_barrier", "K_b3done:")
    a("s_mov_b64 exec, s[44:45]")
    for e in range(4): a(f"ds_read_b32 v{16+e}, v{16+e} offset:{AGG}")
    a("s_mov_b64 exec, -1", f"ds_read_b64 v[54:55], v63 offset:{MISC+16}")
    a("s_lshl_b32 s18, s17, 3", f"s_add_u32 s18, s18, {WS_T:#x}", "v_lshl_add_u32 v58, v53, 11, s18")
    a("s_cmp_eq_u32 s16, 14", "s_cbranch_scc1 K_w14", "s_waitcnt vmcnt(0)", "K_w14:", "s_waitcnt vmcnt(2)")
    a("s_mov_b64 exec, s[44:45]")
    for e in range(4): a(f"v_lshl_or_b32 v{12+e}, v{12+e}, 8, v{8+e}")
    for e in range(4):
        a("s_waitcnt lgkmcnt(4)")
        a(f"v_lshl_add_u32 v{16+e}, v{20+e}, 2, v{16+e}", f"ds_write_b32 v{16+e}, v{12+e}")
    a("s_mov_b64 exec, -1")
    a("s_waitcnt lgkmcnt(0)", "s_barrier")
    st.stamp(4)
    a("ds_read_b128 v[40:43], v61", f"ds_read_b128 v[16:19], v63 offset:{MISC}")
    a("global_load_dwordx2 v[8:9], v58, s[54:55] sc1")
    a("v_cmp_gt_u32 vcc, v54, v0", "s_and_saveexec_b64 s[20:21], vcc", "s_mov_b32 s58, 0", "s_cbranch_execz K_nost")
    a("s_mov_b32 s58, 1", "s_waitcnt lgkmcnt(0)")
    for i in range(4): a(f"v_or_b32 v{40+i}, v{16+i}, v{40+i}")
    a("global_store_dwordx4 v57, v[40:43], s[54:55] sc1")
    a("K_nost:", "s_mov_b64 exec, -1")
    st.stamp(5)
    a("v_readfirstlane_b32 s62, v55")
    for i in range(4): a(f"v_mov_b32 v{44+i}, {SENT:#x}", f"v_mov_b32 v{48+i}, 0")
    fill_list(56,44)
    a("v_cmp_gt_u32 vcc, 256, v56", "s_and_saveexec_b64 s[20:21], vcc", f"ds_write_b128 v56, v[48:51] offset:{CNT}", "s_mov_b64 exec, s[20:21]")
    a("v_and_b32 v52, 3, v0", "v_lshlrev_b32 v1, 4, v52")
    a("s_mov_b32 s22, 0xaaaaaaaa", "s_mov_b32 s23, 0xaaaaaaaa", "s_mov_b32 s28, 0xcccccccc", "s_mov_b32 s29, 0xcccccccc")
    a("v_mov_b32 v3, 0xffff", "v_mov_b32 v4, 0xffff0000", "v_cndmask_b32 v4, v3, v4, s[22:23]",
      "v_cndmask_b32 v3, v4, v63, s[28:29]", "v_cndmask_b32 v4, v63, v4, s[28:29]")
    a("s_mov_b32 s30, 0xbe38aa3b", f"s_mov_b32 s31, {PSTR}", "v_mul_u32_u24 v62, s31, v53", "v_add_u32 v62, v62, v1")
    a("s_mov_b32 s33, 0", "s_mov_b32 s37, 0", f"s_mov_b32 s31, {LS//4}", f"s_movk_i32 s43, {MARK}")
    a("v_lshrrev_b32 v7, 4, v0", "v_min_u32 v6, 48, v7")
    a(f"v_mul_u32_u24 v5, {LS}, v6", "v_bfe_u32 v54, v0, 2, 2", "v_lshl_add_u32 v5, v54, 2, v5")
    a("v_sub_u32 v54, v7, v6", "v_lshl_add_u32 v5, v54, 6, v5", f"v_add_u32 v5, {LIST}, v5")
    a("v_lshlrev_b32 v6, 1, v6", "v_sub_u32 v6, v1, v6")
    for r in range(24,40): a(f"v_mov_b32 v{r}, 0")
    a("s_waitcnt lgkmcnt(0)", "s_barrier")
    a("s_cmp_lt_u32 s16, 12", "s_cbranch_scc1 K_noq")
    a("v_bfe_u32 v16, v0, 2, 2", "v_lshl_add_u32 v16, v60, 3, v16", "v_lshlrev_b32 v16, 7, v16", "v_lshl_add_u32 v16, v1, 1, v16")
    for k in range(2):
        for T in range(4):
            for hh in range(2):
                r=64+T*8+k*4+hh*2
                a(f"ds_read_b64_tr_b16 v[{r}:{r+1}], v16 offset:{WQL+k*4096+hh*512+8*T}")
    a(f"v_mul_u32_u24 v17, {RS}, v59", "v_lshl_add_u32 v17, v60, 5, v17")
    for k in range(2):
        a(f"s_waitcnt lgkmcnt({8-8*k})")
        for T in range(4):
            d=104+T*4; A=64+T*8+k*4; B=96+k*4
            a(f"v_mfma_f32_16x16x32_bf16 v[{d}:{d+3}], v[{A}:{A+3}], v[{B}:{B+3}], "+("0" if k==0 else f"v[{d}:{d+3}]"))
    a("s_nop 7")
    for T in range(4):
        d=104+T*4; r=64+2*T
        a(f"v_cvt_pk_bf16_f32 v{r}, v{d}, v{d+1}", f"v_cvt_pk_bf16_f32 v{r+1}, v{d+2}, v{d+3}")
    a(f"ds_write_b128 v17, v[64:67] offset:{QL}", f"ds_write_b128 v17, v[68:71] offset:{QL+16}")
    a("K_noq:")
    for r in range(XB+32,XB+64): a(f"v_mov_b32 v{r}, 0")
    a("s_memrealtime s[60:61]", "s_cmp_eq_u32 s58, 0", "s_mov_b32 s58, 0", "s_cbranch_scc1 K_tp", "s_waitcnt vmcnt(1) lgkmcnt(0)", "s_branch K_tp1")
    a("K_tp:", "s_waitcnt vmcnt(0) lgkmcnt(0)", "K_tp1:")
    a(f"s_add_u32 s60, s60, {BIAS+200}", "s_addc_u32 s61, s61, 0", "s_sub_u32 s60, s60, s56", "s_and_b32 s61, s61, 0xfff", "s_and_b32 s59, s57, 0xfff")
    a("v_mov_b32 v2, v8", "v_mov_b32 v61, v9", "v_subrev_u32 v9, s56, v9", "v_lshrrev_b32 v8, 20, v8")
    a("v_cmp_ne_u32 s[20:21], s61, v8", "v_cmp_ne_u32 s[44:45], s59, v8", "v_cmp_lt_u32 vcc, s60, v9", "s_and_b64 s[20:21], s[20:21], s[44:45]", "s_or_b64 exec, vcc, s[20:21]", "s_cbranch_execz K_tok")
    if o.sleep: a(f"s_sleep {o.sleep}")
    a("global_load_dwordx2 v[8:9], v58, s[54:55] sc1", "s_memrealtime s[60:61]", "s_add_u32 s58, s58, 1", "s_cmp_lt_u32 s58, 16", "s_cbranch_scc1 K_tp")
    a("global_load_dwordx2 v[10:11], v63, s[52:53] sc1", f"s_cmp_ge_u32 s58, {MAXPOLL}", "s_cbranch_scc1 K_end", "s_waitcnt vmcnt(0)")
    a("v_readfirstlane_b32 s20, v10", "v_readfirstlane_b32 s21, v11", "s_cmp_eq_u64 s[20:21], 0", "s_cbranch_scc1 K_tp", "s_not_b64 s[56:57], s[20:21]", "s_branch K_tp")
    a("K_tok:", "s_mov_b64 exec, -1")
    st.stamp(6)
    a("K_batch:")
    a("v_and_b32 v56, 0x3ff, v2", "v_bfe_u32 v57, v2, 10, 10", "v_add_u32 v56, s33, v56", "v_lshl_add_u32 v56, v56, 4, v62")
    a("v_subrev_u32 v57, s33, v57", "v_cmp_lt_i32 vcc, 8, v57", "v_sub_u32 v57, v57, v52")
    a("v_cmp_lt_i32 s[44:45], 0, v57", "v_cmp_lt_i32 s[46:47], 4, v57")
    for r in range(40,48): a(f"v_mov_b32 v{r}, {MARK>>1:#x}")
    def issue(tag):
        a("s_mov_b64 exec, s[44:45]", f"s_cbranch_execz K_e1{tag}", "global_load_dwordx4 v[40:43], v56, s[54:55] sc1", f"K_e1{tag}:")
        a("s_mov_b64 exec, s[46:47]", f"s_cbranch_execz K_e2{tag}", "global_load_dwordx4 v[44:47], v56, s[54:55] offset:64 sc1", f"K_e2{tag}:")
    issue("a")
    a("s_mov_b64 exec, -1", "v_lshlrev_b32 v20, 22, v61", "v_lshrrev_b32 v21, 10, v61", "v_lshrrev_b32 v22, 20, v61", "v_lshrrev_b32 v23, 20, v2",
      "v_lshlrev_b32 v21, 22, v21", "v_lshlrev_b32 v22, 22, v22", "v_alignbit_b32 v23, v23, v61, 30", "v_lshlrev_b32 v23, 22, v23")
    a("s_mov_b64 exec, -1", "v_mov_b32 v58, 1", "s_mov_b32 s58, 0", "s_mov_b32 s18, 0x400000", f"s_mov_b32 s19, {MARK*(LS//4)}")
    a("s_cbranch_vccz K_nf", "v_mov_b32 v16, 0x40000000", f"ds_or_b32 v63, v16 offset:{CNT+252}", "K_nf:")
    a("v_subrev_u32 v16, s62, v61", f"v_cmp_lt_i32 vcc, {BIAS:#x}, v16", "s_cbranch_vccz K_ep")
    a("s_not_b64 s[20:21], s[56:57]", "v_mov_b32 v16, s20", "v_mov_b32 v17, s21", "s_mov_b64 exec, 1", "global_atomic_umax_x2 v63, v[16:17], s[52:53] sc1", "s_mov_b64 exec, -1")
    a("K_ep:", "s_waitcnt vmcnt(0)")
    st.stamp(7)
    for s in range(2):
        b=40+4*s; P=44+2*s; Nw=38+2*s
        a(f"s_mov_b64 exec, s[{P}:{P+1}]", f"s_mov_b64 s[{Nw}:{Nw+1}], s[{P}:{P+1}]")
        for i in range(4): a(f"v_xor_b32 v{b+i}, v{20+i}, v{b+i}")
        a(f"v_or3_b32 v16, v{b}, v{b+1}, v{b+2}", f"v_or_b32 v16, v16, v{b+3}", f"v_cmp_le_u32 s[{P}:{P+1}], s18, v16")
    a("s_andn2_b64 s[38:39], s[38:39], s[44:45]", "s_andn2_b64 s[40:41], s[40:41], s[46:47]")
    a("s_or_b64 s[20:21], s[44:45], s[46:47]", "s_cbranch_scc0 K_nore")
    issue("b")
    a("K_nore:")
    for s in range(2):
        a(f"s_mov_b64 exec, s[{38+2*s}:{39+2*s}]")
        if s==1: a("s_cbranch_execz K_at_done")
        for e in range(4):
            r=40+4*s+e
            a(f"v_and_b32 v{r+8}, 0xff, v{r}")
        for e in range(4):
            r=40+4*s+e
            a(f"v_cmpx_ne_u32 vcc, s43, v{r+8}")
            if s==1: a(f"s_cbranch_execz K_at_done")
            a(f"ds_add_rtn_u32 v{8+4*s+e}, v{r+8}, v58 offset:{CNT}")
    a("K_at_done:")
    for s in range(2):
        a(f"s_mov_b64 exec, s[{38+2*s}:{39+2*s}]")
        for r in range(40+4*s,44+4*s): a(f"v_lshrrev_b32 v{r}, 1, v{r}", f"v_mul_u32_u24 v{r+8}, s31, v{r+8}")
    a("s_waitcnt lgkmcnt(0)")
    for s in range(2):
        a(f"s_mov_b64 exec, s[{38+2*s}:{39+2*s}]")
        for e in range(4):
            r=40+4*s+e
            a(f"v_cmpx_ne_u32 vcc, s19, v{r+8}")
            if s==1: a(f"s_cbranch_execz K_sc_done")
            a(f"v_lshl_add_u32 v{r+8}, v{8+4*s+e}, 2, v{r+8}", f"ds_write_b32 v{r+8}, v{r} offset:{LIST}")
    a("K_sc_done:", "s_mov_b64 exec, -1")
    a("s_cmp_eq_u64 s[20:21], 0", "s_cbranch_scc1 K_eok")
    a("s_add_u32 s58, s58, 1", f"s_cmp_lt_u32 s58, {MAXPOLL}", "s_cbranch_scc1 K_ep", "s_endpgm")
    a("K_eok:")
    a("v_and_b32 v56, 63, v0", "v_lshlrev_b32 v56, 2, v56", "v_min_u32 v59, 48, v7", f"v_mul_u32_u24 v60, {RS}, v59", "v_add_u32 v60, v60, v1", "v_lshlrev_b32 v59, 2, v59")
    a("s_movk_i32 s41, 64", "s_cmp_eq_u32 s16, 12", "s_cselect_b32 s41, 256, s41", f"s_movk_i32 s35, {CAP}", "s_mov_b32 s38, 0")
    def rd(ereg,va):
        a(f"ds_read2_b32 v[{ereg}:{ereg+1}], v{va} offset0:0 offset1:4", f"ds_read2_b32 v[{ereg+2}:{ereg+3}], v{va} offset0:8 offset1:12")
    def load1(b,t,ereg):
        a(f"v_add_u32 v{ereg+t}, v{ereg+t}, v6")
        if o.exp=="noload": return
        a(f"buffer_load_dwordx4 v[{b+8*t}:{b+8*t+3}], v{ereg+t}, s[12:15], 0 offen{o.xf}",
          f"buffer_load_dwordx4 v[{b+8*t+4}:{b+8*t+7}], v{ereg+t}, s[12:15], 0 offen offset:64{o.xf}")
    a("s_waitcnt lgkmcnt(0)", "s_barrier")
    st.stamp(8)
    if o.prio==3: a("s_setprio 3")
    if o.prio==5: a("s_setprio 2", "s_cmp_ge_u32 s16, 4", "s_cbranch_scc1 K_pz", "s_setprio 3", "K_pz:")
    rd(48,5)
    a(f"ds_read_b32 v56, v56 offset:{CNT}", f"ds_read_b32 v59, v59 offset:{CNT}")
    a(f"ds_read_b128 v[16:19], v60 offset:{QL}", f"ds_read_b128 v[20:23], v60 offset:{QL+64}")
    a("s_cmp_gt_u32 s16, 12", "s_cbranch_scc1 K_now0")
    a("s_waitcnt lgkmcnt(4)")
    for t in range(4): load1(XB,t,48)
    a("K_now0:")
    a("s_waitcnt lgkmcnt(2)")
    a("v_readlane_b32 s34, v56, 63", "v_and_b32 v56, 0xffff, v56", "v_cmp_lt_u32 vcc, s35, v56")
    a("s_cbranch_vccnz K_ovf")
    a("K_pass:")
    a("s_cmp_gt_u32 s16, 12", "s_cbranch_scc1 K_rdone")
    a("v_readlane_b32 s35, v59, 0", "v_readlane_b32 s36, v59, 16", "v_readlane_b32 s39, v59, 32", "v_readlane_b32 s40, v59, 48")
    a("s_max_u32 s35, s35, s36", "s_max_u32 s39, s39, s40", "s_max_u32 s35, s35, s39")
    a("s_sub_i32 s35, s35, s37", "s_max_i32 s35, s35, 0", f"s_min_u32 s35, s35, {CAP}")
    a("s_cmp_lg_u32 s16, 12", "s_cbranch_scc1 K_norm")
    a("s_and_b32 s36, s35, 63", "s_min_u32 s36, s36, 16", "s_lshr_b32 s35, s35, 6", "s_lshl_b32 s35, s35, 4", "s_add_u32 s35, s35, s36")
    a("K_norm:")
    a("s_cmp_le_u32 s35, 16", "s_cbranch_scc1 K_last0")
    a("s_sub_u32 s36, s35, 1", "s_bfe_u32 s39, s36, 0x20002", "s_lshr_b32 s36, s36, 4")
    a("s_mul_i32 s40, s36, s41", "v_add_u32 v56, s40, v5", "v_add_u32 v57, s41, v5")
    rd(8,56)
    a("s_waitcnt lgkmcnt(0)")
    for t in range(4):
        load1(XB+32,t,8)
        if t<3: a(f"s_cmp_eq_u32 s39, {t}", f"s_cbranch_scc1 K_t{t}")
    def compute(b,reload=None):
        if o.exp=="nocompute": return
        for z in range(4):
            for t in range(4):
                A=b+8*t+2*z; D=40+4*t
                a(f"v_mfma_f32_4x4x4_16b_bf16 v[{D}:{D+3}], v[{A}:{A+1}], v[{16+2*z}:{17+2*z}], "+("0" if z==0 else f"v[{D}:{D+3}]"))
        a("s_nop 1")
        for k in range(3):
            for t in range(4):
                j=[x for x in range(4) if x!=t][k]
                a(f"v_add_f32_dpp v{40+4*t+t}, v{40+4*t+j}, v{40+4*t+t} quad_perm:[{j},{j},{j},{j}] row_mask:0xf bank_mask:0xf")
        a("v_cndmask_b32 v40, v40, v45, s[22:23]", "v_cndmask_b32 v50, v50, v55, s[22:23]", "v_cndmask_b32 v56, v40, v50, s[28:29]")
        a("v_mul_f32 v56, s30, v56", "v_exp_f32 v56, v56", "s_nop 0", "v_add_f32 v56, 1.0, v56", "v_rcp_f32 v56, v56", "s_nop 0",
          "v_cvt_pk_bf16_f32 v56, v56, v56", "s_nop 1")
        for t in range(4):
            a(f"v_and_b32_dpp v{40+2*t}, v56, v3 quad_perm:[{t},{t},{t},{t}] row_mask:0xf bank_mask:0xf",
              f"v_and_b32_dpp v{41+2*t}, v56, v4 quad_perm:[{t},{t},{t},{t}] row_mask:0xf bank_mask:0xf")
        for t in range(4):
            for z in range(4):
                A=b+8*t+2*z; D=24+4*z
                a(f"v_mfma_f32_4x4x4_16b_bf16 v[{D}:{D+3}], v[{A}:{A+1}], v[{40+2*t}:{41+2*t}], v[{D}:{D+3}]")
            if reload is not None: load1(b,t,8)
    for h in range(2):
        b=XB+32*h
        a(f"K_loop{h}:", "s_waitcnt vmcnt(8)", f"K_go{h}:")
        if o.il:
            a("s_cmp_lt_u32 s36, 2", f"s_cbranch_scc1 K_pen{h}")
            rd(8,57); a("v_add_u32 v57, s41, v57", "s_sub_u32 s36, s36, 1")
            if o.prio==3: a("s_cmp_ge_u32 s36, 2", f"s_cbranch_scc1 K_pp{h}", "s_setprio 2", f"K_pp{h}:")
            a.L.append("@WAITLGKM@")
            compute(b,True)
            i=a.L.index("@WAITLGKM@"); a.L.pop(i)
            j=[k for k in range(i,len(a.L)) if a.L[k].strip().startswith("v_add_u32 v8, v8, v6")][0]
            a.L.insert(j,"    s_waitcnt lgkmcnt(0)")
            if h==1: a("s_branch K_loop0")
            continue
        a("s_cmp_lt_u32 s36, 2", f"s_cbranch_scc1 K_nord{h}")
        rd(8,57); a("v_add_u32 v57, s41, v57")
        a(f"K_nord{h}:")
        if o.prio==3:
            a("s_cmp_ge_u32 s36, 3", f"s_cbranch_scc1 K_pp{h}", "s_setprio 2", "s_cmp_eq_u32 s36, 2", f"s_cbranch_scc1 K_pp{h}", "s_setprio 1", f"K_pp{h}:")
        if o.prio==5:
            a("s_cmp_lt_u32 s16, 4", f"s_cbranch_scc1 K_pp{h}", "s_cmp_ge_u32 s36, 3", f"s_cbranch_scc1 K_pp{h}", "s_setprio 1", "s_cmp_eq_u32 s36, 2", f"s_cbranch_scc1 K_pp{h}", "s_setprio 0", f"K_pp{h}:")
        compute(b)
        a("s_sub_u32 s36, s36, 1", "s_cmp_eq_u32 s36, 0", f"s_cbranch_scc1 K_last{1-h}")
        a("s_waitcnt lgkmcnt(0)")
        for t in range(4): load1(b,t,8)
        if h==1: a("s_branch K_loop0")
    if o.il:
        for h in range(2):
            a(f"K_pen{h}:")
            if o.prio==3: a("s_setprio 1")
            compute(XB+32*h)
            a(f"s_branch K_last{1-h}")
    for h in range(2):
        a(f"K_last{h}:")
        if o.prio==3: a("s_setprio 0")
        a("s_waitcnt vmcnt(0) lgkmcnt(0)")
        compute(XB+32*h)
        if h==0: a("s_branch K_rdone")
    a("K_rdone:")
    st.stamp(9)
    a("s_or_b32 s35, s34, s38", "s_cmp_lg_u32 s35, 0", "s_cbranch_scc1 K_more")
    a("s_cmp_gt_u32 s16, 12", "s_cbranch_scc1 K_epi")
    a(f"v_mul_u32_u24 v56, {RS}, v7", "v_and_b32 v57, 15, v0", "v_lshl_add_u32 v56, v57, 3, v56", "s_nop 1")
    for z in range(2):
        for j in range(4):
            r=24+4*z+j
            a(f"v_add_f32_dpp v{r}, v{r}, v{r} row_ror:8 row_mask:0xf bank_mask:0x3")
    for z in range(2):
        for j in range(4):
            r=24+4*z+j
            a(f"v_add_f32_dpp v{r}, v{r+8}, v{r+8} row_ror:8 row_mask:0xf bank_mask:0xc")
    for j in range(4): a(f"v_add_f32_dpp v{24+j}, v{24+j}, v{24+j} row_shl:4 row_mask:0xf bank_mask:0x5")
    for j in range(4): a(f"v_add_f32_dpp v{24+j}, v{28+j}, v{28+j} row_shr:4 row_mask:0xf bank_mask:0xa")
    a("v_cvt_pk_bf16_f32 v24, v24, v25", "v_cvt_pk_bf16_f32 v25, v26, v27", f"ds_write_b64 v56, v[24:25] offset:{AGG}")
    a("s_cmp_lt_u32 s16, 12", "s_cbranch_scc1 K_wait_end")
    a("K_epi:")
    a("v_and_b32 v10, 15, v0", "v_bfe_u32 v11, v0, 4, 2", "v_lshlrev_b32 v9, 8, v11", "v_lshl_add_u32 v9, v10, 3, v9")
    for half in range(2):
        for f in range(4*half,4*half+4):
            T=f>>1; k=f&1
            for e in range(8):
                a(f"ds_read_u16 v{96+8*(f&3)+e}, v9 offset:{WVL+4096*k+2*T+(8*(e&3)+(e>>2))*128}")
        a("s_waitcnt lgkmcnt(0)")
        for f in range(4*half,4*half+4):
            for i in range(4): a(f"v_lshl_or_b32 v{64+4*f+i}, v{97+8*(f&3)+2*i}, 16, v{96+8*(f&3)+2*i}")
    a("v_bfe_u32 v12, v0, 6, 2", "v_lshl_add_u32 v13, v12, 4, v10", f"v_mul_u32_u24 v13, {RS}, v13", "v_lshl_add_u32 v13, v11, 4, v13")
    a("v_lshl_add_u32 v14, v12, 2, v11", "v_lshlrev_b32 v14, 17, v14", "v_lshl_add_u32 v14, v10, 3, v14", "s_lshl_b32 s19, s17, 7", "v_add_u32 v14, s19, v14")
    for i in range(1,4): a(f"v_add_u32 v{14+i}, {32768*i:#x}, v14")
    srd(a,24,50,51,N*128)
    a("s_waitcnt lgkmcnt(0)", "s_barrier")
    st.stamp(10)
    for k in range(2): a(f"ds_read_b128 v[{40+4*k}:{43+4*k}], v13 offset:{AGG+64*k}")
    for k in range(2):
        a(f"s_waitcnt lgkmcnt({1-k})")
        for T in range(4):
            B=64+4*(2*T+k); D=96+4*T
            a(f"v_mfma_f32_16x16x32_bf16 v[{D}:{D+3}], v[{40+4*k}:{43+4*k}], v[{B}:{B+3}], "+("0" if k==0 else f"v[{D}:{D+3}]"))
    a("s_nop 7")
    a("s_cmp_lg_u32 s16, 15", "s_cbranch_scc1 K_nosum")
    for T in range(4): a(f"v_add_f32 v{96+4*T}, v{96+4*T}, v{97+4*T}", f"v_add_f32 v{98+4*T}, v{98+4*T}, v{99+4*T}")
    for T in range(4): a(f"v_add_f32 v{96+4*T}, v{96+4*T}, v{98+4*T}")
    a("K_nosum:")
    for i in range(4):
        a(f"v_cvt_pk_bf16_f32 v{24+2*i}, v{96+i}, v{100+i}", f"v_cvt_pk_bf16_f32 v{25+2*i}, v{104+i}, v{108+i}")
        a(f"buffer_store_dwordx2 v[{24+2*i}:{25+2*i}], v{14+i}, s[24:27], 0 offen{o.sto}")
    if o.stamps:
        a("s_waitcnt vmcnt(0)"); st.stamp(11)
        a("s_cmp_lg_u32 s16, 13", "s_cbranch_scc1 K_end")
        st3=Stamps(a,True,84,10,2); st3.store(54,44,nm)
    a("s_endpgm")
    a("K_wait_end:", "s_waitcnt lgkmcnt(0)", "s_barrier")
    if o.stamps:
        a(f"s_cmp_lg_u32 s16, {o.sw}", "s_cbranch_scc1 K_end")
        st.n=10; st.store(54,44,nm)
    a("K_end:", "s_endpgm")
    for t in range(3): a(f"K_t{t}:", f"s_waitcnt vmcnt({2*t+2})", "s_branch K_go0")
    a("K_ovf:")
    a("v_lshlrev_b32 v60, 4, v0", f"v_add_u32 v60, {SPILL}, v60")
    a("ds_write_b128 v60, v[40:43]", "ds_write_b128 v60, v[44:47] offset:16384", "ds_write_b128 v60, v[8:11] offset:32768", "ds_write_b128 v60, v[12:15] offset:49152")
    a("s_mov_b32 s42, 0", "s_mov_b32 s35, 0", "K_mx:", "v_readlane_b32 s36, v56, s35", "s_max_u32 s42, s42, s36", "s_add_u32 s35, s35, 1", "s_cmp_lt_u32 s35, 49", "s_cbranch_scc1 K_mx")
    a("s_mov_b32 s37, 0")
    a("K_npass:")
    a("s_waitcnt vmcnt(0) lgkmcnt(0)", "s_barrier")
    a("v_lshlrev_b32 v56, 4, v0")
    for i in range(4): a(f"v_mov_b32 v{44+i}, {SENT:#x}")
    fill_list(56,44)
    a("s_waitcnt lgkmcnt(0)", "s_barrier")
    a(f"v_add_u32 v60, {SPILL}, v56")
    a("ds_read_b128 v[40:43], v60", "ds_read_b128 v[44:47], v60 offset:16384", "ds_read_b128 v[8:11], v60 offset:32768", "ds_read_b128 v[12:15], v60 offset:49152")
    a(f"s_movk_i32 s35, {CAP}", f"s_movk_i32 s36, {LS//2}", f"s_movk_i32 s39, {MARK>>1}")
    a("s_waitcnt lgkmcnt(0)")
    for i in range(8):
        a(f"v_subrev_u32 v{8+i}, s37, v{8+i}", f"v_and_b32 v49, 127, v{40+i}", "v_mul_u32_u24 v48, s36, v49", f"v_lshl_add_u32 v48, v{8+i}, 2, v48")
        a(f"v_cmpx_ne_u32 vcc, s39, v49", f"v_cmpx_gt_u32 vcc, s35, v{8+i}", f"ds_write_b32 v48, v{40+i} offset:{LIST}", "s_mov_b64 exec, -1")
    for r in range(XB+32,XB+64): a(f"v_mov_b32 v{r}, 0")
    a("v_min_u32 v59, 48, v7", "v_lshlrev_b32 v59, 2, v59")
    a("s_waitcnt lgkmcnt(0)", "s_barrier")
    rd(48,5)
    a(f"ds_read_b32 v59, v59 offset:{CNT}", f"s_add_u32 s35, s37, {CAP}", "s_cmp_lt_u32 s35, s42", "s_cselect_b32 s38, 1, 0", "s_waitcnt lgkmcnt(0)")
    a("s_cmp_gt_u32 s16, 12", "s_cbranch_scc1 K_rdone")
    for t in range(4): load1(XB,t,48)
    a("s_branch K_pass")
    a("K_more:")
    a("s_cmp_eq_u32 s38, 0", "s_cbranch_scc1 K_next", f"s_add_u32 s37, s37, {CAP}", "s_branch K_npass")
    a("K_next:")
    a("s_waitcnt lgkmcnt(0)", "s_barrier")
    a("v_lshlrev_b32 v56, 4, v0")
    for i in range(4): a(f"v_mov_b32 v{40+i}, 0", f"v_mov_b32 v{44+i}, {SENT:#x}")
    a("v_cmp_gt_u32 vcc, 256, v56", "s_and_saveexec_b64 s[20:21], vcc", f"ds_write_b128 v56, v[40:43] offset:{CNT}", "s_mov_b64 exec, s[20:21]")
    fill_list(56,44)
    for r in range(XB+32,XB+64): a(f"v_mov_b32 v{r}, 0")
    a("v_and_b32 v52, 3, v0")
    a("s_add_u32 s33, s33, 8", "s_mov_b32 s37, 0", "s_waitcnt lgkmcnt(0)", "s_barrier", "s_branch K_batch")
    return a.text()+kd(nm,128,100)

HDR="""; gather_scatter (FeatGraph-style SDDMM + SpMM), one launch of 256 co-resident workgroups (one per CU):
; @launch grid=(256,1,1) block=(1024,1,1) lds=%d
.amdgcn_target "amdgcn-amd-amdhsa--gfx950"
.text
"""
if __name__=="__main__":
    ap=argparse.ArgumentParser()
    ap.add_argument("-o",default="k4.s"); ap.add_argument("--stamps",action="store_true")
    ap.add_argument("--sleep",type=int,default=2); ap.add_argument("--sw",type=int,default=0); ap.add_argument("--tlb",type=int,default=0)
    ap.add_argument("--sto",default=""); ap.add_argument("--ldf",default=""); ap.add_argument("--late",type=int,default=1); ap.add_argument("--delay",type=int,default=0); ap.add_argument("--prio",type=int,default=0); ap.add_argument("--il",type=int,default=0); ap.add_argument("--exp",default=""); ap.add_argument("--xf",default="")
    o=ap.parse_args()
    if o.sto: o.sto=" "+o.sto
    if o.ldf: o.ldf=" "+o.ldf
    if o.xf: o.xf=" "+o.xf
    txt=HDR%LDS+gen(o)
    open(o.o,"w").write(txt)
    build(o.o,o.o.replace(".s",".co"))
    print("built",o.o,"lds",LDS)
```

```python
import sys, argparse
from build import build
from gen import Asm, kd, head, srd, Stamps, N, E, EPW, WS_STAMP, NSTAMP
SENT=0x7FFFFF80; MARK=0xFC
PIN=EPW*4; PSTR=15616; WS_T=0x400000
HIST=0; CNT=1024; MISC=1280; AGG=1312; RS=144; QL=AGG+64*RS; WQL=QL+64*RS; WVL=WQL+8192; LIST=WVL+8192; LS=528; CAP=128; LISTB=49*LS
SPILL=(LIST+LISTB+15)//16*16; STAGE=SPILL+65536; LDS=STAGE+PSTR
MAXPOLL=200000; BIAS=350
DPPS=["row_shr:1 row_mask:0xf bank_mask:0xf bound_ctrl:0","row_shr:2 row_mask:0xf bank_mask:0xf bound_ctrl:0","row_shr:4 row_mask:0xf bank_mask:0xf bound_ctrl:0",
      "row_shr:8 row_mask:0xf bank_mask:0xf bound_ctrl:0","row_bcast:15 row_mask:0xa bank_mask:0xf","row_bcast:31 row_mask:0xc bank_mask:0xf"]
def scan_fill(a,v,fill):
    fill=list(fill)
    for d in DPPS:
        for _ in range(2): a(fill.pop(0) if fill else "s_nop 0")
        a(f"v_add_u32_dpp v{v}, v{v}, v{v} {d}")
    for f in fill: a(f)

def gen(o):
    a=Asm(); st=Stamps(a,o.stamps,64,0,14)
    nm="gather_scatter__kernel_systems_refs_featgraph__graph_kernel"
    XB=64
    def fill_list(vaddr,vd):
        a(f"ds_write_b128 v{vaddr}, v[{vd}:{vd+3}] offset:{LIST}")
        a(f"v_cmp_gt_u32 vcc, {LISTB-16384}, v{vaddr}", "s_and_saveexec_b64 s[20:21], vcc", f"ds_write_b128 v{vaddr}, v[{vd}:{vd+3}] offset:{LIST+16384}", "s_mov_b64 exec, s[20:21]")

    def pf2(lbl):
        n=o.pfb
        a("s_cmp_lt_u32 s16, 13", f"s_cbranch_scc1 {lbl}", "s_cmp_eq_u32 s16, 14", f"s_cbranch_scc1 {lbl}")
        a("s_lshr_b32 s19, s2, 3", f"s_mul_i32 s19, s19, {n*2*64*128}", "s_sub_u32 s18, s16, 13", f"s_mul_i32 s18, s18, {n*32*128}", "s_add_u32 s19, s19, s18",
          "v_and_b32 v107, 63, v0", "v_lshlrev_b32 v107, 7, v107", "v_add_u32 v107, s19, v107")
        for i in range(n):
            a(f"buffer_load_dword v{25+i}, v107, s[12:15], 0 offen")
            if i<n-1: a("v_add_u32 v107, 0x2000, v107")
        a(f"{lbl}:")
    a(head(nm)); st.stamp(0)
    a("s_load_dwordx8 s[4:11], s[0:1], 0",
      "s_load_dwordx8 s[48:55], s[0:1], 32")
    a("s_cmp_ge_u32 s2, 256", "s_cbranch_scc1 K_end")
    if o.delay:
        a("s_and_b32 s60, s2, 31", "s_cmp_lg_u32 s60, 5", "s_cbranch_scc1 K_nodelay", "s_memrealtime s[60:61]", "s_waitcnt lgkmcnt(0)", "K_dl:", "s_memrealtime s[56:57]", "s_waitcnt lgkmcnt(0)",
          "s_sub_u32 s56, s56, s60", f"s_cmp_lt_u32 s56, {o.delay}", "s_cbranch_scc1 K_dl", "K_nodelay:")
    a("s_memrealtime s[56:57]")
    a("v_lshrrev_b32 v1, 6, v0", "v_lshlrev_b32 v56, 4, v0", "v_readfirstlane_b32 s16, v1")
    a(f"s_mul_i32 s18, s2, {PIN}", "v_add_u32 v57, s18, v56", f"s_sub_u32 s18, {E*4}, s18", f"s_min_u32 s18, s18, {PIN}")
    a("v_cmp_gt_u32 s[44:45], s18, v56")
    a("s_and_b32 s17, s2, 7", "s_lshl_b32 s17, s17, 5", "s_lshr_b32 s19, s2, 3", "s_or_b32 s17, s17, s19")
    for i in range(4): a(f"v_mov_b32 v{40+i}, 3", f"v_mov_b32 v{48+i}, {MARK:#x}")
    a(f"v_add_u32 v61, {STAGE}, v56", "v_mov_b32 v63, 0", "v_mov_b32 v55, 1")
    a("s_waitcnt lgkmcnt(0)")
    a("s_mov_b64 exec, s[44:45]")
    a("s_cbranch_execz K_noload")
    a(f"global_load_dwordx4 v[8:11], v57, s[8:9]{o.ldf}")
    if not o.late: a(f"global_load_dwordx4 v[12:15], v57, s[6:7]{o.ldf}")
    a("K_noload:", "s_mov_b64 exec, -1")
    st.stamp(1)
    a("s_cmp_lg_u32 s16, 0", "s_cbranch_scc1 K_nz", f"ds_write_b128 v56, v[40:43] offset:{HIST}", "K_nz:")
    a(f"v_cmp_gt_u32 vcc, {PSTR}, v56", "s_and_saveexec_b64 s[20:21], vcc", "ds_write_b128 v61, v[48:51]", "s_mov_b64 exec, s[20:21]")
    if o.late==1:
        a("s_mov_b64 exec, s[44:45]", "s_cbranch_execz K_noload2", f"global_load_dwordx4 v[12:15], v57, s[6:7]{o.ldf}", "K_noload2:", "s_mov_b64 exec, -1")
    srd(a,12,4,5,N*128)
    a("s_lshl_b32 s19, s16, 10", f"s_add_u32 s19, s19, {WQL}", "s_mov_b32 m0, s19", "v_and_b32 v62, 0x1fff, v56")
    a("s_cmp_ge_u32 s16, 8", "s_cselect_b32 s24, s48, s10", "s_cselect_b32 s25, s49, s11", "s_and_b32 s25, s25, 0xffff", "s_mov_b32 s26, 8192", "s_mov_b32 s27, 0x20000")
    a("buffer_load_dwordx4 v62, s[24:27], 0 offen lds")
    a("v_mov_b32 v2, v57")
    a("v_lshrrev_b32 v53, 2, v0", f"s_mul_i32 s18, s2, {PSTR}", "v_add_u32 v57, s18, v56")
    a("v_and_b32 v52, 0x3ff, v56", "s_lshl_b32 s19, s2, 11", f"s_add_u32 s19, s19, {WS_T:#x}", "v_lshl_add_u32 v58, v52, 1, s19")
    a("s_cmp_lt_u32 s16, 12", "s_cbranch_scc1 K_nox")
    a("v_and_b32 v59, 15, v0", "v_bfe_u32 v60, v0, 4, 2", "v_bfe_u32 v62, v0, 6, 2", "v_lshl_add_u32 v59, v62, 4, v59")
    a("v_lshlrev_b32 v62, 15, v59", "v_lshl_add_u32 v62, v60, 4, v62", "s_lshl_b32 s19, s17, 7", "v_add_u32 v62, s19, v62")
    a("buffer_load_dwordx4 v[96:99], v62, s[12:15], 0 offen", "buffer_load_dwordx4 v[100:103], v62, s[12:15], 0 offen offset:64")
    if o.tlb:
        a(f"s_cmp_lg_u32 s16, 15", "s_cbranch_scc1 K_nox", "v_and_b32 v40, 63, v0", f"v_lshlrev_b32 v41, 16, v40", "v_lshlrev_b32 v40, 15, v40", "v_min_u32 v40, 0x186000, v40")
        a("global_load_dword v104, v41, s[54:55]", f"v_add_u32 v41, {64<<16:#x}, v41", "v_min_u32 v41, 0x47f000, v41", "global_load_dword v105, v41, s[54:55]", "global_load_dword v106, v40, s[50:51]")
    if o.pf:
        a("s_cmp_eq_u32 s16, 12", "s_cbranch_scc1 K_nox", "s_cmp_eq_u32 s16, 14", "s_cbranch_scc1 K_nox")
        a("s_lshr_b32 s19, s2, 3", f"s_mul_i32 s19, s19, {o.pf*2*64*128}", "s_sub_u32 s18, s16, 13", f"s_mul_i32 s18, s18, {o.pf*32*128}", "s_add_u32 s19, s19, s18",
          "v_lshlrev_b32 v107, 3, v52", "v_add_u32 v107, s19, v107")
        for i in range(o.pf):
            a(f"buffer_load_dword v{24+i}, v107, s[12:15], 0 offen")
            if i<o.pf-1: a("v_add_u32 v107, 0x2000, v107")
    if o.once:
        a("s_cmp_lg_u32 s16, 14", "s_cbranch_scc1 K_nox", "s_mul_i32 s19, s2, 6272", "v_lshlrev_b32 v107, 3, v52", "v_add_u32 v107, s19, v107", "s_mov_b32 exec_hi, 0x1ffff",
          "buffer_load_dword v24, v107, s[12:15], 0 offen", "s_mov_b64 exec, -1")
    a("K_nox:")
    a("s_waitcnt lgkmcnt(0)", "s_barrier")
    a("s_cmp_lt_u32 s16, 12", "s_cbranch_scc1 K_eA", "s_cmp_eq_u32 s16, 12", "s_cbranch_scc0 K_b2")
    a("K_eB:", "s_waitcnt vmcnt(4)", "K_eA:", "s_waitcnt vmcnt(2)" )
    a.L[-4:]=[]; a("K_eB:", f"s_waitcnt vmcnt({3 if o.late==2 else 4})", "s_branch K_eC", "K_eA:", f"s_waitcnt vmcnt({1 if o.late==2 else 2})", "K_eC:")
    a("s_mov_b64 exec, s[44:45]")
    if o.late==2: a("s_cbranch_execz K_nl3", f"global_load_dwordx4 v[12:15], v2, s[6:7]{o.ldf}", "K_nl3:")
    st.stamp(2)
    for e in range(4):
        a(f"v_lshlrev_b32_sdwa v{16+e}, 2, v{8+e} dst_sel:DWORD dst_unused:UNUSED_PAD src0_sel:DWORD src1_sel:BYTE_0")
        a(f"ds_add_rtn_u32 v{20+e}, v{16+e}, v55 offset:{HIST}")
    for e in range(4):
        a(f"v_lshlrev_b32_sdwa v{8+e}, 2, v{8+e} dst_sel:DWORD dst_unused:UNUSED_PAD src0_sel:DWORD src1_sel:BYTE_1")
    a("s_mov_b64 exec, -1")
    a("K_b2:")
    a("s_waitcnt lgkmcnt(0)", "s_barrier")
    st.stamp(3)
    a("s_cmp_eq_u32 s16, 13", "s_cbranch_scc1 K_scanB", "s_cmp_lg_u32 s16, 15", "s_cbranch_scc1 K_noscan")
    a(f"ds_read_b128 v[40:43], v52 offset:{HIST}", "s_memrealtime s[60:61]", "s_waitcnt lgkmcnt(0)")
    for i in range(4): a(f"v_lshrrev_b32 v{40+i}, 2, v{40+i}")
    a("v_add3_u32 v44, v40, v41, v42", f"s_add_u32 s60, s60, {BIAS}", "v_add_u32 v44, v44, v43", "s_addc_u32 s61, s61, 0")
    scan_fill(a,44,["s_lshl_b32 s92, s60, 22", "s_lshr_b32 s93, s60, 10", "s_lshl_b32 s93, s93, 22", "s_lshr_b32 s94, s60, 20", "s_lshl_b32 s94, s94, 22", "s_lshr_b64 s[96:97], s[60:61], 30",
                    "s_lshl_b32 s95, s96, 22", "v_mov_b32 v16, s92", "v_mov_b32 v17, s93", "v_mov_b32 v18, s94", "v_mov_b32 v19, s95", "s_lshl_b32 s59, s61, 20"])
    a(f"ds_write_b128 v63, v[16:19] offset:{MISC}", "v_mov_b32 v49, s60", "v_mov_b32 v51, s60", f"ds_write_b32 v63, v49 offset:{MISC+20}", "s_waitcnt lgkmcnt(0)")
    a("s_barrier")
    a("v_sub_u32 v47, v44, v43", "v_sub_u32 v46, v47, v42", "v_sub_u32 v45, v46, v41", "v_sub_u32 v44, v45, v40")
    for i in range(4): a(f"v_lshl_or_b32 v{40+i}, v{40+i}, 10, v{44+i}")
    a("v_or_b32 v44, s59, v40", "v_mov_b32 v45, s60", "v_or_b32 v46, s59, v41", "v_mov_b32 v47, s60",
      "v_or_b32 v48, s59, v42", "v_or_b32 v50, s59, v43")
    a("global_store_dwordx4 v58, v[44:47], s[54:55] sc1", "global_store_dwordx4 v58, v[48:51], s[54:55] offset:16 sc1", "s_branch K_b3done")
    a("K_scanB:")
    a(f"ds_read_b128 v[40:43], v52 offset:{HIST}", f"s_mov_b32 s58, {STAGE-12}", "s_waitcnt lgkmcnt(0)")
    for i in range(4): a(f"v_lshrrev_b32 v{40+i}, 2, v{40+i}")
    a("v_add3_u32 v44, v40, v41, v42", "v_add_u32 v44, v44, v43")
    scan_fill(a,44,["v_lshlrev_b32 v51, 4, v43", "v_lshlrev_b32 v50, 4, v42", "v_sub_u32 v51, s58, v51", "v_lshlrev_b32 v49, 4, v41",
                    "v_sub_u32 v50, v51, v50", "v_lshlrev_b32 v48, 4, v40", "v_sub_u32 v49, v50, v49", "v_sub_u32 v48, v49, v48"])
    for i in range(4): a(f"v_lshl_add_u32 v{48+i}, v44, 4, v{48+i}")
    a(f"ds_write_b128 v52, v[48:51] offset:{AGG}")
    a("s_mov_b32 exec_lo, 0", "s_mov_b32 exec_hi, 0x80000000", f"ds_write_b32 v63, v44 offset:{MISC+16}", "s_mov_b64 exec, -1")
    a("K_noscan:", "s_waitcnt lgkmcnt(0)", "s_barrier", "K_b3done:")
    a("s_mov_b64 exec, s[44:45]")
    for e in range(4): a(f"ds_read_b32 v{16+e}, v{16+e} offset:{AGG}")
    a("s_mov_b64 exec, -1", f"ds_read_b64 v[54:55], v63 offset:{MISC+16}")
    a("s_lshl_b32 s18, s17, 3", f"s_add_u32 s18, s18, {WS_T:#x}", "v_lshl_add_u32 v58, v53, 11, s18")
    if o.pf:
        a("s_cmp_lt_u32 s16, 13", "s_cbranch_scc1 K_w0", "s_cmp_eq_u32 s16, 14", "s_cbranch_scc1 K_w14", f"s_waitcnt vmcnt({o.pf})", "s_branch K_w15", "K_w0:", "s_waitcnt vmcnt(0)", "K_w14:", "s_waitcnt vmcnt(2)", "K_w15:")
    else:
        a("s_cmp_eq_u32 s16, 15", "s_cbranch_scc1 K_w14", "s_waitcnt vmcnt(0)", "K_w14:")
    if o.pfb and o.pfat==3: pf2("K_pf2")
    a("s_mov_b64 exec, s[44:45]")
    for e in range(4): a(f"v_lshl_or_b32 v{12+e}, v{12+e}, 8, v{8+e}")
    for e in range(4):
        a("s_waitcnt lgkmcnt(4)")
        a(f"v_lshl_add_u32 v{16+e}, v{20+e}, 2, v{16+e}", f"ds_write_b32 v{16+e}, v{12+e}")
    a("s_mov_b64 exec, -1")
    a("s_waitcnt lgkmcnt(0)", "s_barrier")
    st.stamp(4)
    a("ds_read_b128 v[40:43], v61", f"ds_read_b128 v[16:19], v63 offset:{MISC}")
    a("global_load_dwordx2 v[8:9], v58, s[54:55] sc1")
    a("v_cmp_gt_u32 vcc, v54, v0", "s_and_saveexec_b64 s[20:21], vcc", "s_mov_b32 s58, 0", "s_cbranch_execz K_nost")
    a("s_mov_b32 s58, 1", "s_waitcnt lgkmcnt(0)")
    for i in range(4): a(f"v_or_b32 v{40+i}, v{16+i}, v{40+i}")
    a("global_store_dwordx4 v57, v[40:43], s[54:55] sc1")
    a("K_nost:", "s_mov_b64 exec, -1")
    st.stamp(5)
    a("v_readfirstlane_b32 s62, v55")
    if o.pfb and o.pfat==4: pf2("K_pf2")
    for i in range(4): a(f"v_mov_b32 v{44+i}, {SENT:#x}", f"v_mov_b32 v{48+i}, 0")
    fill_list(56,44)
    a("v_cmp_gt_u32 vcc, 256, v56", "s_and_saveexec_b64 s[20:21], vcc", f"ds_write_b128 v56, v[48:51] offset:{CNT}", "s_mov_b64 exec, s[20:21]")
    a("v_and_b32 v52, 3, v0", "v_lshlrev_b32 v1, 4, v52")
    a("s_mov_b32 s22, 0xaaaaaaaa", "s_mov_b32 s23, 0xaaaaaaaa", "s_mov_b32 s28, 0xcccccccc", "s_mov_b32 s29, 0xcccccccc")
    a("v_mov_b32 v3, 0xffff", "v_mov_b32 v4, 0xffff0000", "v_cndmask_b32 v4, v3, v4, s[22:23]",
      "v_cndmask_b32 v3, v4, v63, s[28:29]", "v_cndmask_b32 v4, v63, v4, s[28:29]")
    a("s_mov_b32 s30, 0xbe38aa3b", f"s_mov_b32 s31, {PSTR}", "v_mul_u32_u24 v62, s31, v53", "v_add_u32 v62, v62, v1")
    a("s_mov_b32 s33, 0", "s_mov_b32 s37, 0", f"s_mov_b32 s31, {LS//4}", f"s_movk_i32 s43, {MARK}")
    a("v_lshrrev_b32 v7, 4, v0", "v_min_u32 v6, 48, v7")
    a(f"v_mul_u32_u24 v5, {LS}, v6", "v_bfe_u32 v54, v0, 2, 2", "v_lshl_add_u32 v5, v54, 2, v5")
    a("v_sub_u32 v54, v7, v6", "v_lshl_add_u32 v5, v54, 6, v5", f"v_add_u32 v5, {LIST}, v5")
    a("v_lshlrev_b32 v6, 1, v6", "v_sub_u32 v6, v1, v6")
    for r in range(24,40): a(f"v_mov_b32 v{r}, 0")
    a("s_cmp_lg_u32 s16, 15", "s_cbranch_scc1 K_w15", "s_waitcnt vmcnt(0)", "K_w15:")
    a("s_waitcnt lgkmcnt(0)", "s_barrier")
    a("s_cmp_lt_u32 s16, 12", "s_cbranch_scc1 K_noq")
    a("v_bfe_u32 v16, v0, 2, 2", "v_lshl_add_u32 v16, v60, 3, v16", "v_lshlrev_b32 v16, 7, v16", "v_lshl_add_u32 v16, v1, 1, v16")
    for k in range(2):
        for T in range(4):
            for hh in range(2):
                r=64+T*8+k*4+hh*2
                a(f"ds_read_b64_tr_b16 v[{r}:{r+1}], v16 offset:{WQL+k*4096+hh*512+8*T}")
    a(f"v_mul_u32_u24 v17, {RS}, v59", "v_lshl_add_u32 v17, v60, 5, v17")
    for k in range(2):
        a(f"s_waitcnt lgkmcnt({8-8*k})")
        for T in range(4):
            d=104+T*4; A=64+T*8+k*4; B=96+k*4
            a(f"v_mfma_f32_16x16x32_bf16 v[{d}:{d+3}], v[{A}:{A+3}], v[{B}:{B+3}], "+("0" if k==0 else f"v[{d}:{d+3}]"))
    a("s_nop 7")
    for T in range(4):
        d=104+T*4; r=64+2*T
        a(f"v_cvt_pk_bf16_f32 v{r}, v{d}, v{d+1}", f"v_cvt_pk_bf16_f32 v{r+1}, v{d+2}, v{d+3}")
    a(f"ds_write_b128 v17, v[64:67] offset:{QL}", f"ds_write_b128 v17, v[68:71] offset:{QL+16}")
    a("K_noq:")
    for r in range(XB+32,XB+64): a(f"v_mov_b32 v{r}, 0")
    a("s_memrealtime s[60:61]", "s_cmp_eq_u32 s58, 0", "s_mov_b32 s58, 0", "s_cbranch_scc1 K_tp", "s_waitcnt vmcnt(1) lgkmcnt(0)", "s_branch K_tp1")
    a("K_tp:", "s_waitcnt vmcnt(0) lgkmcnt(0)", "K_tp1:")
    a(f"s_add_u32 s60, s60, {BIAS+200}", "s_addc_u32 s61, s61, 0", "s_sub_u32 s60, s60, s56", "s_and_b32 s61, s61, 0xfff", "s_and_b32 s59, s57, 0xfff")
    a("v_mov_b32 v2, v8", "v_mov_b32 v61, v9", "v_subrev_u32 v9, s56, v9", "v_lshrrev_b32 v8, 20, v8")
    a("v_cmp_ne_u32 s[20:21], s61, v8", "v_cmp_ne_u32 s[44:45], s59, v8", "v_cmp_lt_u32 vcc, s60, v9", "s_and_b64 s[20:21], s[20:21], s[44:45]", "s_or_b64 exec, vcc, s[20:21]", "s_cbranch_execz K_tok")
    if o.sleep: a(f"s_sleep {o.sleep}")
    a("global_load_dwordx2 v[8:9], v58, s[54:55] sc1", "s_memrealtime s[60:61]", "s_add_u32 s58, s58, 1", "s_cmp_lt_u32 s58, 16", "s_cbranch_scc1 K_tp")
    a("global_load_dwordx2 v[10:11], v63, s[52:53] sc1", f"s_cmp_ge_u32 s58, {MAXPOLL}", "s_cbranch_scc1 K_end", "s_waitcnt vmcnt(0)")
    a("v_readfirstlane_b32 s20, v10", "v_readfirstlane_b32 s21, v11", "s_cmp_eq_u64 s[20:21], 0", "s_cbranch_scc1 K_tp", "s_not_b64 s[56:57], s[20:21]", "s_branch K_tp")
    a("K_tok:", "s_mov_b64 exec, -1")
    st.stamp(6)
    a("K_batch:")
    a("v_and_b32 v56, 0x3ff, v2", "v_bfe_u32 v57, v2, 10, 10", "v_add_u32 v56, s33, v56", "v_lshl_add_u32 v56, v56, 4, v62")
    a("v_subrev_u32 v57, s33, v57", "v_cmp_lt_i32 vcc, 8, v57", "v_sub_u32 v57, v57, v52")
    a("v_cmp_lt_i32 s[44:45], 0, v57", "v_cmp_lt_i32 s[46:47], 4, v57")
    for r in range(40,48): a(f"v_mov_b32 v{r}, {MARK>>1:#x}")
    def issue(tag):
        a("s_mov_b64 exec, s[44:45]", f"s_cbranch_execz K_e1{tag}", "global_load_dwordx4 v[40:43], v56, s[54:55] sc1", f"K_e1{tag}:")
        a("s_mov_b64 exec, s[46:47]", f"s_cbranch_execz K_e2{tag}", "global_load_dwordx4 v[44:47], v56, s[54:55] offset:64 sc1", f"K_e2{tag}:")
    issue("a")
    a("s_mov_b64 exec, -1", "v_lshlrev_b32 v20, 22, v61", "v_lshrrev_b32 v21, 10, v61", "v_lshrrev_b32 v22, 20, v61", "v_lshrrev_b32 v23, 20, v2",
      "v_lshlrev_b32 v21, 22, v21", "v_lshlrev_b32 v22, 22, v22", "v_alignbit_b32 v23, v23, v61, 30", "v_lshlrev_b32 v23, 22, v23")
    a("s_mov_b64 exec, -1", "v_mov_b32 v58, 1", "s_mov_b32 s58, 0", "s_mov_b32 s18, 0x400000", f"s_mov_b32 s19, {MARK*(LS//4)}")
    a("s_cbranch_vccz K_nf", "v_mov_b32 v16, 0x40000000", f"ds_or_b32 v63, v16 offset:{CNT+252}", "K_nf:")
    a("v_subrev_u32 v16, s62, v61", f"v_cmp_lt_i32 vcc, {BIAS:#x}, v16", "s_cbranch_vccz K_ep")
    a("s_not_b64 s[20:21], s[56:57]", "v_mov_b32 v16, s20", "v_mov_b32 v17, s21", "s_mov_b64 exec, 1", "global_atomic_umax_x2 v63, v[16:17], s[52:53] sc1", "s_mov_b64 exec, -1")
    a("K_ep:", "s_waitcnt vmcnt(0)")
    st.stamp(7)
    for s in range(2):
        b=40+4*s; P=44+2*s; Nw=38+2*s
        a(f"s_mov_b64 exec, s[{P}:{P+1}]", f"s_mov_b64 s[{Nw}:{Nw+1}], s[{P}:{P+1}]")
        for i in range(4): a(f"v_xor_b32 v{b+i}, v{20+i}, v{b+i}")
        a(f"v_or3_b32 v16, v{b}, v{b+1}, v{b+2}", f"v_or_b32 v16, v16, v{b+3}", f"v_cmp_le_u32 s[{P}:{P+1}], s18, v16")
    a("s_andn2_b64 s[38:39], s[38:39], s[44:45]", "s_andn2_b64 s[40:41], s[40:41], s[46:47]")
    a("s_or_b64 s[20:21], s[44:45], s[46:47]", "s_cbranch_scc0 K_nore")
    issue("b")
    a("K_nore:")
    for s in range(2):
        a(f"s_mov_b64 exec, s[{38+2*s}:{39+2*s}]")
        if s==1: a("s_cbranch_execz K_at_done")
        for e in range(4):
            r=40+4*s+e
            a(f"v_and_b32 v{r+8}, 0xff, v{r}")
        for e in range(4):
            r=40+4*s+e
            a(f"v_cmpx_ne_u32 vcc, s43, v{r+8}")
            if s==1: a(f"s_cbranch_execz K_at_done")
            a(f"ds_add_rtn_u32 v{8+4*s+e}, v{r+8}, v58 offset:{CNT}")
    a("K_at_done:")
    for s in range(2):
        a(f"s_mov_b64 exec, s[{38+2*s}:{39+2*s}]")
        for r in range(40+4*s,44+4*s): a(f"v_lshrrev_b32 v{r}, 1, v{r}", f"v_mul_u32_u24 v{r+8}, s31, v{r+8}")
    a("s_waitcnt lgkmcnt(0)")
    for s in range(2):
        a(f"s_mov_b64 exec, s[{38+2*s}:{39+2*s}]")
        for e in range(4):
            r=40+4*s+e
            a(f"v_cmpx_ne_u32 vcc, s19, v{r+8}")
            if s==1: a(f"s_cbranch_execz K_sc_done")
            a(f"v_lshl_add_u32 v{r+8}, v{8+4*s+e}, 2, v{r+8}", f"ds_write_b32 v{r+8}, v{r} offset:{LIST}")
    a("K_sc_done:", "s_mov_b64 exec, -1")
    a("s_cmp_eq_u64 s[20:21], 0", "s_cbranch_scc1 K_eok")
    a("s_add_u32 s58, s58, 1", f"s_cmp_lt_u32 s58, {MAXPOLL}", "s_cbranch_scc1 K_ep", "s_endpgm")
    a("K_eok:")
    if o.pfb and o.pfat==5: pf2("K_pf2")
    a("v_and_b32 v56, 63, v0", "v_lshlrev_b32 v56, 2, v56", "v_min_u32 v59, 48, v7", f"v_mul_u32_u24 v60, {RS}, v59", "v_add_u32 v60, v60, v1", "v_lshlrev_b32 v59, 2, v59")
    a("s_movk_i32 s41, 64", "s_cmp_eq_u32 s16, 12", "s_cselect_b32 s41, 256, s41", f"s_movk_i32 s35, {CAP}", "s_mov_b32 s38, 0")
    def rd(ereg,va):
        a(f"ds_read2_b32 v[{ereg}:{ereg+1}], v{va} offset0:0 offset1:4", f"ds_read2_b32 v[{ereg+2}:{ereg+3}], v{va} offset0:8 offset1:12")
    def load1(b,t,ereg):
        a(f"v_add_u32 v{ereg+t}, v{ereg+t}, v6")
        if o.exp=="noload": return
        a(f"buffer_load_dwordx4 v[{b+8*t}:{b+8*t+3}], v{ereg+t}, s[12:15], 0 offen{o.xf}",
          f"buffer_load_dwordx4 v[{b+8*t+4}:{b+8*t+7}], v{ereg+t}, s[12:15], 0 offen offset:64{o.xf}")
    a("s_waitcnt lgkmcnt(0)", "s_barrier")
    st.stamp(8)
    if o.prio==3: a("s_setprio 3")
    if o.prio==5: a("s_setprio 2", "s_cmp_ge_u32 s16, 4", "s_cbranch_scc1 K_pz", "s_setprio 3", "K_pz:")
    rd(48,5)
    a(f"ds_read_b32 v56, v56 offset:{CNT}", f"ds_read_b32 v59, v59 offset:{CNT}")
    a(f"ds_read_b128 v[16:19], v60 offset:{QL}", f"ds_read_b128 v[20:23], v60 offset:{QL+64}")
    a("s_cmp_gt_u32 s16, 12", "s_cbranch_scc1 K_now0")
    a("s_waitcnt lgkmcnt(4)")
    for t in range(4): load1(XB,t,48)
    a("K_now0:")
    a("s_waitcnt lgkmcnt(2)")
    a("v_readlane_b32 s34, v56, 63", "v_and_b32 v56, 0xffff, v56", "v_cmp_lt_u32 vcc, s35, v56")
    a("s_cbranch_vccnz K_ovf")
    a("K_pass:")
    a("s_cmp_gt_u32 s16, 12", "s_cbranch_scc1 K_rdone")
    a("v_readlane_b32 s35, v59, 0", "v_readlane_b32 s36, v59, 16", "v_readlane_b32 s39, v59, 32", "v_readlane_b32 s40, v59, 48")
    a("s_max_u32 s35, s35, s36", "s_max_u32 s39, s39, s40", "s_max_u32 s35, s35, s39")
    a("s_sub_i32 s35, s35, s37", "s_max_i32 s35, s35, 0", f"s_min_u32 s35, s35, {CAP}")
    a("s_cmp_lg_u32 s16, 12", "s_cbranch_scc1 K_norm")
    a("s_and_b32 s36, s35, 63", "s_min_u32 s36, s36, 16", "s_lshr_b32 s35, s35, 6", "s_lshl_b32 s35, s35, 4", "s_add_u32 s35, s35, s36")
    a("K_norm:")
    a("s_cmp_le_u32 s35, 16", "s_cbranch_scc1 K_last0")
    a("s_sub_u32 s36, s35, 1", "s_bfe_u32 s39, s36, 0x20002", "s_lshr_b32 s36, s36, 4")
    a("s_mul_i32 s40, s36, s41", "v_add_u32 v56, s40, v5", "v_add_u32 v57, s41, v5")
    rd(8,56)
    a("s_waitcnt lgkmcnt(0)")
    for t in range(4):
        load1(XB+32,t,8)
        if t<3: a(f"s_cmp_eq_u32 s39, {t}", f"s_cbranch_scc1 K_t{t}")
    def compute(b,adds=False):
        if o.exp=="nocompute": return
        f=(["s_waitcnt lgkmcnt(0)","v_add_u32 v8, v8, v6","v_add_u32 v9, v9, v6","v_add_u32 v10, v10, v6","s_nop 0","v_add_u32 v11, v11, v6"] if adds else ["s_nop 0"]*6)
        a(".p2align 3")
        for z in range(4):
            for t in range(4):
                A=b+8*t+2*z; D=40+4*t
                a(f"v_mfma_f32_4x4x4_16b_bf16 v[{D}:{D+3}], v[{A}:{A+1}], v[{16+2*z}:{17+2*z}], "+("0" if z==0 else f"v[{D}:{D+3}]"))
        a(f[0],f[1])
        for k in range(3):
            for t in range(4):
                j=[x for x in range(4) if x!=t][k]
                a(f"v_add_f32_dpp v{40+4*t+t}, v{40+4*t+j}, v{40+4*t+t} quad_perm:[{j},{j},{j},{j}] row_mask:0xf bank_mask:0xf")
        a("v_cndmask_b32 v40, v40, v45, s[22:23]", "v_cndmask_b32 v50, v50, v55, s[22:23]", "v_cndmask_b32 v56, v40, v50, s[28:29]")
        a("v_mul_f32 v56, s30, v56", "v_exp_f32 v56, v56", f[2], "v_add_f32 v56, 1.0, v56", "v_rcp_f32 v56, v56", f[3],
          "v_cvt_pk_bf16_f32 v56, v56, v56", f[4], f[5])
        for t in range(4):
            a(f"v_and_b32_dpp v{40+2*t}, v56, v3 quad_perm:[{t},{t},{t},{t}] row_mask:0xf bank_mask:0xf",
              f"v_and_b32_dpp v{41+2*t}, v56, v4 quad_perm:[{t},{t},{t},{t}] row_mask:0xf bank_mask:0xf")
        for t in range(4):
            for z in range(4):
                A=b+8*t+2*z; D=24+4*z
                a(f"v_mfma_f32_4x4x4_16b_bf16 v[{D}:{D+3}], v[{A}:{A+1}], v[{40+2*t}:{41+2*t}], v[{D}:{D+3}]")
            if adds and o.il:
                a(f"buffer_load_dwordx4 v[{b+8*t}:{b+8*t+3}], v{8+t}, s[12:15], 0 offen", f"buffer_load_dwordx4 v[{b+8*t+4}:{b+8*t+7}], v{8+t}, s[12:15], 0 offen offset:64")
        if adds and not o.il:
            for t in range(4):
                a(f"buffer_load_dwordx4 v[{b+8*t}:{b+8*t+3}], v{8+t}, s[12:15], 0 offen", f"buffer_load_dwordx4 v[{b+8*t+4}:{b+8*t+7}], v{8+t}, s[12:15], 0 offen offset:64")
    for h in range(2):
        b=XB+32*h
        a(f"K_loop{h}:", "s_waitcnt vmcnt(8)", f"K_go{h}:")
        a("s_cmp_lt_u32 s36, 2", f"s_cbranch_scc1 K_pen{h}")
        rd(8,57); a("v_add_u32 v57, s41, v57", "s_sub_u32 s36, s36, 1")
        compute(b,True)
        if h==1: a("s_branch K_loop0")
    for h in range(2):
        a(f"K_pen{h}:")
        compute(XB+32*h)
        a(f"s_branch K_last{1-h}")
    for h in range(2):
        a(f"K_last{h}:")
        if o.prio==3: a("s_setprio 0")
        a("s_waitcnt vmcnt(0) lgkmcnt(0)")
        compute(XB+32*h)
        if h==0: a("s_branch K_rdone")
    a("K_rdone:")
    st.stamp(9)
    a("s_or_b32 s35, s34, s38", "s_cmp_lg_u32 s35, 0", "s_cbranch_scc1 K_more")
    a("s_cmp_gt_u32 s16, 12", "s_cbranch_scc1 K_epi")
    a(f"v_mul_u32_u24 v56, {RS}, v7", "v_and_b32 v57, 15, v0", "v_lshl_add_u32 v56, v57, 3, v56", "s_nop 1")
    for z in range(2):
        for j in range(4):
            r=24+4*z+j
            a(f"v_add_f32_dpp v{r}, v{r}, v{r} row_ror:8 row_mask:0xf bank_mask:0x3")
    for z in range(2):
        for j in range(4):
            r=24+4*z+j
            a(f"v_add_f32_dpp v{r}, v{r+8}, v{r+8} row_ror:8 row_mask:0xf bank_mask:0xc")
    for j in range(4): a(f"v_add_f32_dpp v{24+j}, v{24+j}, v{24+j} row_shl:4 row_mask:0xf bank_mask:0x5")
    for j in range(4): a(f"v_add_f32_dpp v{24+j}, v{28+j}, v{28+j} row_shr:4 row_mask:0xf bank_mask:0xa")
    a("v_cvt_pk_bf16_f32 v24, v24, v25", "v_cvt_pk_bf16_f32 v25, v26, v27", f"ds_write_b64 v56, v[24:25] offset:{AGG}")
    a("s_cmp_lt_u32 s16, 12", "s_cbranch_scc1 K_wait_end")
    a("K_epi:", "s_waitcnt vmcnt(0)")
    a("v_and_b32 v10, 15, v0", "v_bfe_u32 v11, v0, 4, 2", "v_lshlrev_b32 v9, 8, v11", "v_lshl_add_u32 v9, v10, 3, v9")
    for half in range(2):
        for f in range(4*half,4*half+4):
            T=f>>1; k=f&1
            for e in range(8):
                a(f"ds_read_u16 v{96+8*(f&3)+e}, v9 offset:{WVL+4096*k+2*T+(8*(e&3)+(e>>2))*128}")
        a("s_waitcnt lgkmcnt(0)")
        for f in range(4*half,4*half+4):
            for i in range(4): a(f"v_lshl_or_b32 v{64+4*f+i}, v{97+8*(f&3)+2*i}, 16, v{96+8*(f&3)+2*i}")
    a("v_bfe_u32 v12, v0, 6, 2", "v_lshl_add_u32 v13, v12, 4, v10", f"v_mul_u32_u24 v13, {RS}, v13", "v_lshl_add_u32 v13, v11, 4, v13")
    a("v_lshl_add_u32 v14, v12, 2, v11", "v_lshlrev_b32 v14, 17, v14", "v_lshl_add_u32 v14, v10, 3, v14", "s_lshl_b32 s19, s17, 7", "v_add_u32 v14, s19, v14")
    for i in range(1,4): a(f"v_add_u32 v{14+i}, {32768*i:#x}, v14")
    srd(a,24,50,51,N*128)
    a("s_waitcnt lgkmcnt(0)", "s_barrier")
    st.stamp(10)
    for k in range(2): a(f"ds_read_b128 v[{40+4*k}:{43+4*k}], v13 offset:{AGG+64*k}")
    for k in range(2):
        a(f"s_waitcnt lgkmcnt({1-k})")
        for T in range(4):
            B=64+4*(2*T+k); D=96+4*T
            a(f"v_mfma_f32_16x16x32_bf16 v[{D}:{D+3}], v[{40+4*k}:{43+4*k}], v[{B}:{B+3}], "+("0" if k==0 else f"v[{D}:{D+3}]"))
    a("s_nop 7")
    a("s_cmp_lg_u32 s16, 15", "s_cbranch_scc1 K_nosum")
    for T in range(4): a(f"v_add_f32 v{96+4*T}, v{96+4*T}, v{97+4*T}", f"v_add_f32 v{98+4*T}, v{98+4*T}, v{99+4*T}")
    for T in range(4): a(f"v_add_f32 v{96+4*T}, v{96+4*T}, v{98+4*T}")
    a("K_nosum:")
    for i in range(4):
        a(f"v_cvt_pk_bf16_f32 v{24+2*i}, v{96+i}, v{100+i}", f"v_cvt_pk_bf16_f32 v{25+2*i}, v{104+i}, v{108+i}")
        a(f"buffer_store_dwordx2 v[{24+2*i}:{25+2*i}], v{14+i}, s[24:27], 0 offen{o.sto}")
    if o.stamps:
        a("s_waitcnt vmcnt(0)"); st.stamp(11)
        a("s_cmp_lg_u32 s16, 13", "s_cbranch_scc1 K_end")
        st3=Stamps(a,True,84,10,2); st3.store(54,44,nm)
    a("s_endpgm")
    a("K_wait_end:", "s_waitcnt lgkmcnt(0)", "s_barrier")
    if o.stamps:
        a(f"s_cmp_lg_u32 s16, {o.sw}", "s_cbranch_scc1 K_end")
        st.n=10; st.store(54,44,nm)
    a("K_end:", "s_endpgm")
    for t in range(3): a(f"K_t{t}:", f"s_waitcnt vmcnt({2*t+2})", "s_branch K_go0")
    a("K_ovf:")
    a("v_lshlrev_b32 v60, 4, v0", f"v_add_u32 v60, {SPILL}, v60")
    a("ds_write_b128 v60, v[40:43]", "ds_write_b128 v60, v[44:47] offset:16384", "ds_write_b128 v60, v[8:11] offset:32768", "ds_write_b128 v60, v[12:15] offset:49152")
    a("s_mov_b32 s42, 0", "s_mov_b32 s35, 0", "K_mx:", "v_readlane_b32 s36, v56, s35", "s_max_u32 s42, s42, s36", "s_add_u32 s35, s35, 1", "s_cmp_lt_u32 s35, 49", "s_cbranch_scc1 K_mx")
    a("s_mov_b32 s37, 0")
    a("K_npass:")
    a("s_waitcnt vmcnt(0) lgkmcnt(0)", "s_barrier")
    a("v_lshlrev_b32 v56, 4, v0")
    for i in range(4): a(f"v_mov_b32 v{44+i}, {SENT:#x}")
    fill_list(56,44)
    a("s_waitcnt lgkmcnt(0)", "s_barrier")
    a(f"v_add_u32 v60, {SPILL}, v56")
    a("ds_read_b128 v[40:43], v60", "ds_read_b128 v[44:47], v60 offset:16384", "ds_read_b128 v[8:11], v60 offset:32768", "ds_read_b128 v[12:15], v60 offset:49152")
    a(f"s_movk_i32 s35, {CAP}", f"s_movk_i32 s36, {LS//2}", f"s_movk_i32 s39, {MARK>>1}")
    a("s_waitcnt lgkmcnt(0)")
    for i in range(8):
        a(f"v_subrev_u32 v{8+i}, s37, v{8+i}", f"v_and_b32 v49, 127, v{40+i}", "v_mul_u32_u24 v48, s36, v49", f"v_lshl_add_u32 v48, v{8+i}, 2, v48")
        a(f"v_cmpx_ne_u32 vcc, s39, v49", f"v_cmpx_gt_u32 vcc, s35, v{8+i}", f"ds_write_b32 v48, v{40+i} offset:{LIST}", "s_mov_b64 exec, -1")
    for r in range(XB+32,XB+64): a(f"v_mov_b32 v{r}, 0")
    a("v_min_u32 v59, 48, v7", "v_lshlrev_b32 v59, 2, v59")
    a("s_waitcnt lgkmcnt(0)", "s_barrier")
    rd(48,5)
    a(f"ds_read_b32 v59, v59 offset:{CNT}", f"s_add_u32 s35, s37, {CAP}", "s_cmp_lt_u32 s35, s42", "s_cselect_b32 s38, 1, 0", "s_waitcnt lgkmcnt(0)")
    a("s_cmp_gt_u32 s16, 12", "s_cbranch_scc1 K_rdone")
    for t in range(4): load1(XB,t,48)
    a("s_branch K_pass")
    a("K_more:")
    a("s_cmp_eq_u32 s38, 0", "s_cbranch_scc1 K_next", f"s_add_u32 s37, s37, {CAP}", "s_branch K_npass")
    a("K_next:")
    a("s_waitcnt lgkmcnt(0)", "s_barrier")
    a("v_lshlrev_b32 v56, 4, v0")
    for i in range(4): a(f"v_mov_b32 v{40+i}, 0", f"v_mov_b32 v{44+i}, {SENT:#x}")
    a("v_cmp_gt_u32 vcc, 256, v56", "s_and_saveexec_b64 s[20:21], vcc", f"ds_write_b128 v56, v[40:43] offset:{CNT}", "s_mov_b64 exec, s[20:21]")
    fill_list(56,44)
    for r in range(XB+32,XB+64): a(f"v_mov_b32 v{r}, 0")
    a("v_and_b32 v52, 3, v0")
    a("s_add_u32 s33, s33, 8", "s_mov_b32 s37, 0", "s_waitcnt lgkmcnt(0)", "s_barrier", "s_branch K_batch")
    return a.text()+kd(nm,128,100)

HDR="""; gather_scatter (FeatGraph-style SDDMM + SpMM), one launch of 256 co-resident workgroups (one per CU):
; @launch grid=(256,1,1) block=(1024,1,1) lds=%d
.amdgcn_target "amdgcn-amd-amdhsa--gfx950"
.text
"""
if __name__=="__main__":
    ap=argparse.ArgumentParser()
    ap.add_argument("-o",default="k4.s"); ap.add_argument("--stamps",action="store_true")
    ap.add_argument("--sleep",type=int,default=2); ap.add_argument("--sw",type=int,default=0); ap.add_argument("--tlb",type=int,default=0)
    ap.add_argument("--sto",default=""); ap.add_argument("--ldf",default=""); ap.add_argument("--late",type=int,default=1); ap.add_argument("--delay",type=int,default=0); ap.add_argument("--prio",type=int,default=0); ap.add_argument("--il",type=int,default=0); ap.add_argument("--pf",type=int,default=0); ap.add_argument("--once",type=int,default=0); ap.add_argument("--pfb",type=int,default=0); ap.add_argument("--pfat",type=int,default=3); ap.add_argument("--exp",default=""); ap.add_argument("--xf",default="")
    o=ap.parse_args()
    if o.sto: o.sto=" "+o.sto
    if o.ldf: o.ldf=" "+o.ldf
    if o.xf: o.xf=" "+o.xf
    txt=HDR%LDS+gen(o)
    open(o.o,"w").write(txt)
    build(o.o,o.o.replace(".s",".co"))
    print("built",o.o,"lds",LDS)
```
